```python
import torch

def _softmax(x, axis=-1):
    return torch.softmax(x, dim=axis)
def _gelu(x):
    return torch.nn.functional.gelu(x, approximate="tanh")
def _silu(x):
    return torch.nn.functional.silu(x)
def _sigmoid(x):
    return torch.sigmoid(x)
def _layernorm(x, axis=-1, eps=1e-5):
    m = x.mean(dim=axis, keepdim=True)
    v = x.var(dim=axis, keepdim=True, unbiased=False)
    return (x - m) / torch.sqrt(v + eps)
def _scatter_add(tgt, idx, src, axis=0):
    return tgt.clone().index_add_(axis, idx, src)
def _segment_sum(src, seg, n):
    out = torch.zeros((n,) + src.shape[1:], dtype=src.dtype)
    return out.index_add_(0, seg, src)
def _pad(x, pw):
    flat = tuple(v for pair in reversed(pw) for v in pair)
    return torch.nn.functional.pad(x, flat)

kernel_name = 'recurrent_scan__ssm_conv_h3__glu_gated_glu__prompt'

def setup_inputs():

    _w = (lambda a: (lambda t: t.to(torch.bfloat16) if t.is_floating_point() else t)(torch.as_tensor(a)))
    def _A_setup():
        B, S, D = 1, 2048, 640
        ks = 4
        return {
            "q": _w((lambda *s: torch.randn(*s, dtype=torch.bfloat16) * 0.05)(B, S, D)),
            "k": _w((lambda *s: torch.randn(*s, dtype=torch.bfloat16) * 0.2)(B, S, D)),
            "v": _w((lambda *s: torch.randn(*s, dtype=torch.bfloat16) * 0.2)(B, S, D)),
            "shift_k": _w((lambda *s: torch.randn(*s, dtype=torch.bfloat16) * 0.2)(D, ks) * 0.5),
            "ssm_k": _w((lambda *s: torch.randn(*s, dtype=torch.bfloat16) * 0.2)(D, S) * (1.0 / S ** 0.5)),
            "ssm_D": _w((lambda *s: torch.randn(*s, dtype=torch.bfloat16) * 0.2)(D)),
        }
    _A_in = _A_setup()

    def _B_setup():
        B, S, D, F = 1, 2048, 640, 1728
        return {
            "x": _w((lambda *s: torch.randn(*s, dtype=torch.bfloat16) * 0.05)(B, S, D)),
            "w_gate": _w((lambda *s: torch.randn(*s, dtype=torch.bfloat16) * 0.2)(D, F)),
            "w_up": _w((lambda *s: torch.randn(*s, dtype=torch.bfloat16) * 0.1)(D, F)),
            "w_down": _w((lambda *s: torch.randn(*s, dtype=torch.bfloat16) * 0.1)(F, D)),
        }
    _B_in = _B_setup()

    return {
        "A_q": _A_in["q"],
        "A_k": _A_in["k"],
        "A_v": _A_in["v"],
        "A_shift_k": _A_in["shift_k"],
        "A_ssm_k": _A_in["ssm_k"],
        "A_ssm_D": _A_in["ssm_D"],
        "B_x": _B_in["x"],
        "B_w_gate": _B_in["w_gate"],
        "B_w_up": _B_in["w_up"],
        "B_w_down": _B_in["w_down"],
    }

def reference(A_q, A_k, A_v, A_shift_k, A_ssm_k, A_ssm_D, B_x, B_w_gate, B_w_up, B_w_down):
    def _A_ref(q, k, v, shift_k, ssm_k, ssm_D):
        B, S, D = q.shape
        ks = shift_k.shape[-1]
        k_pad = _pad(k, ((0, 0), (ks - 1, 0), (0, 0)))
        k_shift = torch.zeros_like(k)
        for t in range(ks):
            k_shift = k_shift + k_pad[:, t:t + S, :] * shift_k[:, ks - 1 - t][None, None, :]
        kv = k_shift * v
        L = 2 * S
        kv_pad = _pad(kv, ((0, 0), (0, S), (0, 0)))
        kf_pad = _pad(ssm_k, ((0, 0), (0, S)))
        kv_f = (lambda x, axes=(-2,-1): torch.fft.rfft2(x.float(), dim=axes))(kv_pad[:, None, :, :], axes=(1, 2))
        kf_f = (lambda x, axes=(-2,-1): torch.fft.rfft2(x.float(), dim=axes))(kf_pad[:, None, :], axes=(1, 2))
        kf_f = (lambda x, *d: x.permute(*d))(kf_f, 1, 2, 0)
        y_f = kv_f * kf_f[None, :, :, :]
        y = (lambda x, s, axes=(-2,-1): torch.fft.irfft2(x, s=s, dim=axes).to(torch.bfloat16))(y_f, (1, L), axes=(1, 2))[:, 0, :S, :]
        y = y + kv * ssm_D[None, None, :]
        return q * y

    def _B_ref(x, w_gate, w_up, w_down):
        g = torch.einsum("bsd,df->bsf", x, w_gate)
        u = torch.einsum("bsd,df->bsf", x, w_up)
        h = _sigmoid(g) * u
        return torch.einsum("bsf,fd->bsd", h, w_down)

    x = A_q
    xn = _layernorm(x, axis=-1)
    s = _A_ref(xn, A_k, A_v, A_shift_k, A_ssm_k, A_ssm_D)
    g = _silu(_B_ref(xn, B_w_gate, B_w_up, B_w_down))
    return x + s * g
```

```python
class Asm:
    def __init__(self):
        self.L = []
        self.vm = []
        self.nlabel = 0
    def __call__(self, s):
        self.L.append("    " + s)
    def label(self, n):
        self.L.append(n + ":")
    def newlabel(self, p="L"):
        self.nlabel += 1
        return f"{p}_{self.nlabel}"
    def vmop(self, s, tag):
        self(s); self.vm.append(tag)
    def vmwait(self, tag):
        idx = [i for i, t in enumerate(self.vm) if t == tag]
        if not idx: return
        n = len(self.vm) - 1 - idx[-1]
        n = min(n, 63)
        self(f"s_waitcnt vmcnt({n})")
        self.vm = self.vm[idx[-1] + 1:]
    def vmwait_all(self):
        self("s_waitcnt vmcnt(0)"); self.vm = []
    def text(self):
        return "\n".join(self.L) + "\n"
    def srd(self, d, base, size, off=None):
        if off is None:
            self(f"s_mov_b32 s{d}, s{base}"); self(f"s_mov_b32 s{d+1}, s{base+1}")
        else:
            self(f"s_add_u32 s{d}, s{base}, {off}"); self(f"s_addc_u32 s{d+1}, s{base+1}, 0")
        self(f"s_mov_b32 s{d+2}, {size}"); self(f"s_mov_b32 s{d+3}, 0x20000")

def vr(b, n=1, k="v"):
    return f"{k}{b}" if n == 1 else f"{k}[{b}:{b+n-1}]"
def ar(b, n=1):
    return vr(b, n, "a")

def interleave(A, main, fill, rate=None):
    n = len(main); done = 0
    for i, m in enumerate(main):
        for x in m: emit(A, x)
        tgt = len(fill) if i == n - 1 and rate is None else (min(len(fill), int((i + 1) * rate + 1e-9)) if rate else (i + 1) * len(fill) // n)
        while done < tgt:
            emit(A, fill[done]); done += 1
    return fill[done:]
def emit(A, x):
    if callable(x): x()
    elif isinstance(x, tuple): A.vmop(x[0], x[1])
    else: A(x)

P_Q, P_K, P_V, P_SH, P_SK, P_SD, P_BX, P_WG, P_WU, P_WD, P_OUT, P_DBG, P_WS = [4 + 2 * i for i in range(13)]
WS_KVT, WS_YT, WS_H, WS_ST, WS_DIAG = 0, 0x280000, 0x500000, 0xC00000, 0xD00000
NB = 2621440
```

```python
from base import *
KBUF, UBUF = 8448, 9216
KE, KO = 0, 4224
U1, U0 = 0, 4576
UBASE = 8 * KBUF
PREP = UBASE
def kvprep(A, C):
    st = C["st"]
    A.srd(32, P_K, NB); A.srd(36, P_V, NB); A.srd(40, P_SH, 5120); A.srd(44, P_WS, NB)
    A("s_lshr_b32 s48, s30, 1")
    A("s_and_b32 s49, s30, 1")
    A("s_mul_i32 s50, s48, 81920")
    A("s_mul_i32 s51, s49, 640")
    A("s_add_u32 s50, s50, s51")
    A("s_mul_i32 s51, s49, 2560")
    A("s_movk_i32 s52, 5120")
    D = 16
    for it in range(5):
        b = D + it * 24
        A(f"v_add_u32 v2, {it*256}, v1")
        A("v_mul_u32_u24 v3, 52429, v2")
        A("v_lshrrev_b32 v3, 23, v3")
        A("v_mul_u32_u24 v4, 160, v3")
        A("v_sub_u32 v4, v2, v4")
        A("v_mul_u32_u24 v5, 10240, v3")
        A("v_lshl_add_u32 v5, v4, 2, v5")
        A("v_add_u32 v5, s50, v5")
        A("v_subrev_u32 v6, 3840, v5")
        A("v_lshlrev_b32 v7, 4, v4")
        A.vmop(f"buffer_load_dwordx4 {vr(b+20,4)}, v7, s[40:43], s51 offen", f"t{it}")
        for i in range(3):
            A.vmop(f"buffer_load_dword v{b+i}, v6, s[32:35], 0 offen offset:{i*1280}", f"t{it}")
        for i in range(8):
            so = "0" if i < 4 else "s52"
            A.vmop(f"buffer_load_dword v{b+3+i}, v5, s[32:35], {so} offen offset:{(i%4)*1280}", f"t{it}")
            A.vmop(f"buffer_load_dword v{b+11+i}, v5, s[36:39], {so} offen offset:{(i%4)*1280}", f"t{it}")
        A("v_mul_u32_u24 v7, 272, v4")
        A("v_sub_u32 v3, 7, v3")
        A(f"v_lshl_add_u32 v{8+it}, v3, 4, v7")
        if it == 2: yield "mid"
    yield "issued"
    T = 136
    Kp, Wp, Vp, O, PK = T, T + 22, T + 30, T + 32, T + 48
    A("s_mov_b32 s53, 0xffff0000")
    for it in range(5):
        b = D + it * 24
        A.vmwait(f"t{it}")
        for j in range(4):
            for ch in range(2):
                src = b + 20 + ch * 2 + (j >> 1)
                A(f"v_and_b32 v{Wp+2*j+ch}, s53, v{src}" if j & 1 else f"v_lshlrev_b32 v{Wp+2*j+ch}, 16, v{src}")
        for i in range(11):
            A(f"v_lshlrev_b32 v{Kp+2*i}, 16, v{b+i}")
            A(f"v_and_b32 v{Kp+2*i+1}, s53, v{b+i}")
        for r in range(8):
            A(f"v_pk_mul_f32 {vr(O+2*r,2)}, {vr(Wp+6,2)}, {vr(Kp+2*r,2)}")
        for j in (2, 1, 0):
            for r in range(8):
                A(f"v_pk_fma_f32 {vr(O+2*r,2)}, {vr(Wp+2*j,2)}, {vr(Kp+2*(r+3-j),2)}, {vr(O+2*r,2)}")
        for r in range(8):
            A(f"v_lshlrev_b32 v{Kp+2*r}, 16, v{b+11+r}")
            A(f"v_and_b32 v{Kp+2*r+1}, s53, v{b+11+r}")
        for r in range(8):
            A(f"v_pk_mul_f32 {vr(O+2*r,2)}, {vr(O+2*r,2)}, {vr(Kp+2*r,2)}")
        pk = PK + (it & 1) * 8
        for ch in range(2):
            for q in range(4):
                A(f"v_cvt_pk_bf16_f32 v{pk+4*ch+q}, v{O+2*(7-2*q)+ch}, v{O+2*(6-2*q)+ch}")
        A(f"ds_write_b128 v{8+it}, {vr(pk,4)} offset:{PREP-65536+0}" if False else f"v_add_u32 v7, {PREP}, v{8+it}")
        A(f"ds_write_b128 v7, {vr(pk,4)}")
        A(f"ds_write_b128 v7, {vr(pk+4,4)} offset:128")
    A("v_lshrrev_b32 v2, 4, v1")
    A("v_mul_u32_u24 v2, 272, v2")
    A("v_and_b32 v3, 15, v1")
    A("v_lshl_add_u32 v2, v3, 4, v2")
    A(f"v_add_u32 v2, {PREP}, v2")
    A("v_lshrrev_b32 v4, 3, v1")
    A("v_lshlrev_b32 v4, 12, v4")
    A("v_and_b32 v3, 7, v1")
    A("v_lshl_add_u32 v4, v3, 4, v4")
    A("s_sub_u32 s50, 31, s48")
    A("s_lshl_b32 s50, s50, 7")
    A("s_mul_i32 s51, s49, 1310720")
    A("s_add_u32 s50, s50, s51")
    A("s_waitcnt lgkmcnt(0)")
    A("s_barrier")
    for i in range(10):
        A(f"ds_read_b128 {vr(D+4*i,4)}, v2 offset:{i*16*272}")
    for i in range(10):
        A(f"s_waitcnt lgkmcnt({9-i})")
        A.vmop(f"buffer_store_dwordx4 {vr(D+4*i,4)}, v4, s[44:47], s50 offen{st}", "kvst")
        if i < 9: A("s_add_u32 s50, s50, 131072")
    yield "done"

def conv_early(A, C):
    A.srd(56, P_SK, NB)
    A("s_mul_i32 s60, s30, 10")
    A("s_lshl_b32 s61, s3, 1")
    A("s_add_u32 s61, s60, s61")
    A("s_lshr_b32 s62, s3, 1")
    A("s_add_u32 s62, s62, s60")
    A("s_add_u32 s62, s62, 8")
    A("s_lshl_b32 s63, s61, 12")
    A("s_add_u32 s64, s63, 4096")
    A("s_lshl_b32 s65, s62, 12")
    for n in range(3):
        A(f"s_load_dwordx2 s[{66+2*n}:{67+2*n}], s[{P_SK}:{P_SK+1}], s{63+n}")
    A("s_lshl_b32 s72, s61, 1")
    A(f"s_load_dword s73, s[{P_SD}:{P_SD+1}], s72")
    A("s_lshl_b32 s72, s62, 1")
    A("s_and_b32 s72, s72, 0xfffffffc")
    A(f"s_load_dword s74, s[{P_SD}:{P_SD+1}], s72")
    A(f"s_mul_i32 s75, s3, {2*KBUF}")
    A(f"s_mul_i32 s76, s3, {2*UBUF}")
    A(f"s_add_u32 s76, s76, {UBASE}")
    A("v_lshlrev_b32 v200, 4, v0")
    for n in range(2):
        for x in kdma(A, n, n): emit(A, x)

def kdma(A, n, buf):
    L = []
    L.append(f"s_add_u32 m0, s75, {buf*KBUF+KE+64}")
    L.append(f"s_add_u32 s77, s{63+n}, 6")
    for i in range(4):
        L.append((f"buffer_load_dwordx4 v200, s[56:59], s{63+n} offen offset:{i*1024} lds", f"k{n}"))
    L.append(f"s_add_u32 m0, s75, {buf*KBUF+KO+64}")
    L.append("s_nop 0")
    for i in range(4):
        L.append((f"buffer_load_dwordx4 v200, s[56:59], s77 offen offset:{i*1024} lds", f"k{n}"))
    return L
def kpatch(n, buf):
    return [f"s_lshl_b32 s78, s{66+2*n}, 16", f"s_lshr_b32 s79, s{66+2*n}, 16", f"s_lshl_b32 s72, s{67+2*n}, 16",
            "s_or_b32 s79, s79, s72", "v_mov_b32 v204, s78", "v_mov_b32 v205, s79", "v_mov_b32 v206, s75",
            f"ds_write_b64 v206, v[204:205] offset:{buf*KBUF+KO+56}"]
def udma(A, C, n, buf):
    ld = C["ld"]
    L = [f"s_add_u32 s80, s{P_WS}, s{63+n}", f"s_addc_u32 s81, s{P_WS+1}, 0", "s_movk_i32 s82, 4096", "s_mov_b32 s83, 0x20000",
         f"s_add_u32 m0, s76, {buf*UBUF+U1}", "s_nop 0"]
    for i in range(4):
        L.append((f"buffer_load_dwordx4 v200, s[80:83], 0 offen offset:{i*1024} {ld} lds", f"u{n}"))
    L += [f"s_add_u32 m0, s76, {buf*UBUF+U0}", "s_nop 0"]
    for i in range(4):
        L.append((f"buffer_load_dwordx4 v200, s[80:83], 4 offen offset:{i*1024} {ld} lds", f"u{n}"))
    return L

def conv_pads(A, C):
    A("s_waitcnt lgkmcnt(0)")
    for r in range(4): A(f"v_mov_b32 v{208+r}, 0")
    A("v_and_b32 v201, 3, v0")
    A("v_lshlrev_b32 v201, 4, v201")
    A("v_add_u32 v201, s75, v201")
    for buf in range(2):
        A(f"ds_write_b128 v201, v[208:211] offset:{buf*KBUF+KE}")
        A(f"ds_write_b128 v201, v[208:211] offset:{buf*KBUF+KO}")
    for n in range(2):
        for x in kpatch(n, n): A(x)

def conv_main(A, C):
    st = C["st"]
    for n in range(2):
        for x in udma(A, C, n, n): emit(A, x)
    A("v_min_u32 v201, 27, v0")
    A("v_lshlrev_b32 v201, 4, v201")
    A("v_add_u32 v201, s76, v201")
    for buf in range(2):
        A(f"ds_write_b128 v201, v[208:211] offset:{buf*UBUF+U1+4096}")
        A(f"ds_write_b128 v201, v[208:211] offset:{buf*UBUF+U0+4096}")
    A("v_and_b32 v2, 1, v0")
    A("v_bfe_u32 v3, v0, 1, 3")
    A("v_lshrrev_b32 v4, 4, v0")
    A(f"v_mul_u32_u24 v5, {KO-KE-8}, v2")
    A(f"v_sub_u32 v5, {KO}, v5")
    A("v_lshl_add_u32 v5, v3, 3, v5")
    A("v_lshl_add_u32 v5, v4, 4, v5")
    A("v_add_u32 v212, s75, v5")
    A(f"v_mul_u32_u24 v5, {U0-U1}, v2")
    A(f"v_sub_u32 v5, {U0+448}, v5")
    A("v_lshlrev_b32 v6, 6, v3")
    A("v_sub_u32 v5, v5, v6")
    A("v_lshl_add_u32 v5, v4, 4, v5")
    A("v_add_u32 v213, s76, v5")
    A("v_lshlrev_b32 v5, 6, v3")
    A("v_lshl_add_u32 v5, v4, 4, v5")
    A("v_lshl_add_u32 v214, v2, 3, v5")
    A("v_lshl_add_u32 v5, v3, 2, v2")
    A("v_lshl_add_u32 v5, v4, 3, v5")
    A("v_sub_u32 v5, 29, v5")
    A("v_mov_b32 v6, 0xffff")
    A("v_mov_b32 v7, 0xffff0000")
    for d in range(4):
        A(f"v_cmp_eq_u32 vcc, {2*d}, v5")
        A(f"v_cmp_eq_u32 s[84:85], {2*d+1}, v5")
        A("s_nop 1")
        A(f"v_cndmask_b32 v{216+d}, 0, v6, vcc")
        A(f"v_cndmask_b32 v{216+d}, v{216+d}, v7, s[84:85]")
    A.srd(88, P_WS, NB, WS_YT)
    FA, FB, ACC, AD, PK = [8, 72], [40, 104], [136, 168], 220, 224
    def reads(buf, r, s, tiles):
        L = []
        mx = max(tiles)
        for q in range(mx + 1):
            e = 8 * q + r
            L.append(f"ds_read_b128 {vr(FB[s]+4*q,4)}, v213 offset:{buf*UBUF+64*(56-(8*q-r))}")
            L.append(f"ds_read_b64 {vr(FA[s]+4*q,2)}, v212 offset:{buf*KBUF+64*e}")
            L.append(f"ds_read_b64 {vr(FA[s]+4*q+2,2)}, v212 offset:{buf*KBUF+64*e+8}")
        return L
    def dfrag(sreg, hi):
        L = [f"s_lshr_b32 s72, s{sreg}, 16" if hi else f"s_and_b32 s72, s{sreg}, 0xffff", "s_mul_i32 s72, s72, 0x10001"]
        return L + [f"v_and_b32 v{AD+d}, s72, v{216+d}" for d in range(4)]
    def epi(n, a, tiles):
        L = []
        for k, c in enumerate(tiles):
            p = PK + 2 * (k % 4)
            L.append(f"v_cvt_pk_bf16_f32 v{p}, v{ACC[a]+4*c}, v{ACC[a]+4*c+1}")
            L.append(f"v_cvt_pk_bf16_f32 v{p+1}, v{ACC[a]+4*c+2}, v{ACC[a]+4*c+3}")
            L.append((f"buffer_store_dwordx2 {vr(p,2)}, v214, s[88:91], s{63+n} offen offset:{c*512}{st}", "yst"))
        return L
    def channel(n, buf, a, tiles, pre, nxt, last):
        for r in range(8):
            s = r & 1
            A("s_waitcnt lgkmcnt(0)")
            M = []
            if r == 0:
                for c in tiles:
                    M.append([f"v_mfma_f32_16x16x32_bf16 {vr(ACC[a]+4*c,4)}, {vr(AD,4)}, {vr(FB[s]+4*c,4)}, 0"])
            for q in range(8):
                for c in tiles:
                    if c >= q:
                        M.append([f"v_mfma_f32_16x16x32_bf16 {vr(ACC[a]+4*c,4)}, {vr(FA[s]+4*q,4)}, {vr(FB[s]+4*(c-q),4)}, {vr(ACC[a]+4*c,4)}"])
            F = []
            if r < 7: F += reads(buf, r + 1, s ^ 1, tiles)
            if r == 1: F += pre
            if r == 7 and nxt:
                F += [lambda t=nxt[2]: A.vmwait(t)] + reads(nxt[0], 0, s ^ 1, nxt[1]) + last
            rest = interleave(A, M, F, rate=max(1.0, len(F) / max(1, len(M) - 6)))
            for x in rest: emit(A, x)
    full = list(range(8))
    for x in dfrag(73, 0): A(x)
    A.vmwait("u0")
    for x in reads(0, 0, 0, full): A(x)
    channel(0, 0, 0, full, C.get('pre0', []), (1, full, "u1"), dfrag(73, 1) + kdma(A, 2, 0) + kpatch(2, 0) + udma(A, C, 2, 0))
    A("s_lshr_b32 s72, s3, 1")
    A("s_lshl_b32 s72, s72, 4")
    A("s_lshr_b32 s74, s74, s72")
    channel(1, 1, 1, full, epi(0, 0, full), (0, full, "u2"), dfrag(74, 0))
    La, Lb = A.newlabel("cvh"), A.newlabel("cve")
    A("s_bitcmp1_b32 s3, 0")
    A(f"s_cbranch_scc1 {La}")
    vm0 = list(A.vm)
    for hf, tiles in enumerate(([0, 3, 4, 7], [1, 2, 5, 6])):
        A.vm = list(vm0)
        channel(2, 0, 0, tiles, epi(1, 1, full), None, [])
        A("s_nop 7")
        for x in epi(2, 0, tiles): emit(A, x)
        if hf == 0:
            A(f"s_branch {Lb}"); A.label(La)
    A.label(Lb)
```

```python
from base import *
SLOT, UOFF = 37120, 18560
X0 = 8
ACCV = 168
POOL = 96
def accreg(j, n=16, o=0):
    return vr(ACCV + 16 * j + o, n) if j < 3 else ar(16 * (j - 3) + o, n)
def g1(A, C):
    st, LASTN = C["st"], C.get("lastn", 8)
    A.srd(32, P_Q, NB)
    A("s_lshl_b32 s48, s30, 2"); A("s_add_u32 s48, s48, s3")
    A("s_mul_i32 s49, s48, 40960")
    A("s_mul_i32 s50, s3, 40960")
    for ii in range(5):
        A(f"v_add_u32 v2, {64*ii}, v0")
        A("v_mul_u32_u24 v3, 52429, v2"); A("v_lshrrev_b32 v3, 22, v3")
        A("v_mul_u32_u24 v4, 80, v3"); A("v_sub_u32 v4, v2, v4")
        A("v_xor_b32 v4, v4, v3"); A("v_mul_u32_u24 v3, 1280, v3")
        A(f"v_lshl_add_u32 v{216+ii}, v4, 4, v3")
    for j in range(8):
        for ii in range(5):
            x = ((4 * j) & 12) << 4
            A(f"s_add_u32 m0, s50, {(5*j+ii)*1024}")
            if x: A(f"v_xor_b32 v{221+(ii&1)}, {x}, v{216+ii}"); reg = 221 + (ii & 1)
            else: A("s_nop 0"); reg = 216 + ii
            A.vmop(f"buffer_load_dwordx4 v{reg}, s[32:35], s49 offen lds", "x")
        if j < 7: A("s_add_u32 s49, s49, 5120")
    A("s_cmp_lt_u32 s3, 2")
    A(f"s_cselect_b32 s36, s{P_WG}, s{P_WU}"); A(f"s_cselect_b32 s37, s{P_WG+1}, s{P_WU+1}")
    A("s_mov_b32 s38, 2211840"); A("s_mov_b32 s39, 0x20000")
    A("s_and_b32 s51, s3, 1"); A("s_mul_i32 s52, s51, 576"); A("s_mul_i32 s53, s51, 9216")
    A("s_lshr_b32 s51, s3, 1"); A(f"s_mul_i32 s51, s51, {UOFF}"); A("s_add_u32 s53, s53, s51")
    A("s_mul_i32 s54, s31, 288")
    for i in range(9):
        A(f"v_add_u32 v2, {64*i}, v0"); A("v_add_u32 v2, s52, v2")
        A("v_mul_u32_u24 v3, 58255, v2"); A("v_lshrrev_b32 v3, 20, v3")
        A("v_mul_u32_u24 v4, 18, v3"); A("v_sub_u32 v4, v2, v4")
        A("v_mul_u32_u24 v3, 3456, v3")
        A(f"v_lshl_add_u32 v{224+i}, v4, 4, v3")
        A(f"v_add_u32 v{224+i}, s54, v{224+i}")
    if C.get("wtouch", 1):
        A("v_lshrrev_b32 v2, 2, v0"); A("v_mul_u32_u24 v2, 3456, v2"); A("v_and_b32 v3, 3, v0"); A("v_min_u32 v3, 2, v3")
        A("v_lshl_add_u32 v2, v3, 7, v2"); A("s_and_b32 s51, s3, 1"); A("s_mul_i32 s51, s51, 55296"); A("s_and_b32 s55, s54, 0xffffff80")
        A("s_add_u32 s51, s51, s55")
        for i in range(C.get("wtouch_n", 8)):
            A.vmop(f"buffer_load_dword v{244+i}, v2, s[36:39], s51 offen", "wt")
            A("s_add_u32 s51, s51, 110592")
    A("v_and_b32 v2, 31, v0"); A("v_lshrrev_b32 v3, 5, v0"); A("v_and_b32 v4, 15, v0"); A("v_xor_b32 v4, v4, v3")
    A("v_mul_u32_u24 v5, 1280, v2"); A("v_add_u32 v5, s50, v5")
    for b in range(8):
        A(f"v_xor_b32 v6, {2*b}, v4"); A(f"v_lshl_add_u32 v{ACCV+b}, v6, 4, v5")
    A("v_bfe_u32 v4, v0, 2, 2"); A("v_lshl_add_u32 v4, v3, 3, v4"); A("v_mul_u32_u24 v4, 288, v4")
    A("v_and_b32 v5, 1, v0"); A("v_lshl_add_u32 v4, v5, 4, v4"); A("v_bfe_u32 v5, v0, 1, 1"); A("v_lshl_add_u32 v4, v5, 3, v4")
    A("v_bfe_u32 v5, v0, 4, 1"); A(f"v_mul_u32_u24 v5, {UOFF}, v5"); A("v_add_u32 v233, v4, v5")
    for s in range(1, 4): A(f"v_add_u32 v{233+s}, {s*SLOT}, v233")
    A("v_and_b32 v4, 9, v0"); A("v_bfe_u32 v5, v0, 1, 1"); A("v_lshl_add_u32 v4, v5, 2, v4"); A("v_bfe_u32 v5, v0, 2, 1"); A("v_lshl_add_u32 v4, v5, 1, v4")
    A("v_lshlrev_b32 v4, 4, v4"); A("v_lshl_add_u32 v4, v3, 8, v4"); A("v_bfe_u32 v5, v0, 4, 1"); A("v_mul_u32_u24 v5, 55296, v5"); A("v_add_u32 v237, v4, v5")
    A("v_lshlrev_b32 v238, 3, v2")
    A.srd(40, P_WS, 7077888, WS_H); A.srd(44, P_WS, 16384, WS_ST)
    A("s_mul_i32 s56, s48, 110592"); A("s_mul_i32 s57, s31, 4608"); A("s_add_u32 s56, s56, s57"); A("s_add_u32 s57, s56, 4096")
    A("s_lshl_b32 s58, s48, 8")
    C["stamp"](A, 1)
    A.vmwait("x")
    C["stamp"](A, 2)
    for s in range(40):
        A(f"ds_read_b128 {vr(X0+4*s,4)}, v{ACCV+(s&7)} offset:{256*(s>>3)}")
    A("s_waitcnt lgkmcnt(0)")
    A("s_barrier")
    def wdma(stage):
        L = [f"s_mov_b32 s59, {stage*221184}"]
        for i in range(9):
            L.append(f"s_add_u32 m0, s53, {(stage%4)*SLOT+i*1024}")
            L.append(["s_nop 0", (f"buffer_load_dwordx4 v{224+i}, s[36:39], s59 offen lds", f"w{stage}")])
        return L
    def flat(L):
        o = []
        for x in L: o += x if isinstance(x, list) else [x]
        return o
    S1, S2 = [216, 217], [218, 219]
    for r in S1 + S2: A(f"v_mov_b32 v{r}, 0")
    A("s_mov_b32 s60, 0x3f803f80")
    stats = []
    for i in range(160):
        stats.append([f"v_dot2c_f32_bf16 v{S1[i&1]}, s60, v{X0+i}", f"v_dot2c_f32_bf16 v{S2[i&1]}, v{X0+i}, v{X0+i}"])
    dm = []
    for s in range(4):
        w = wdma(s); dm.append(w[0])
        for i in range(9): dm.append(lambda a=w[1+2*i], b=w[2+2*i]: (A(a), A(b[0]), emit(A, b[1])))
    interleave(A, stats, dm, rate=0.5)
    A("s_nop 2")
    A("v_add_f32 v216, v216, v217"); A("v_add_f32 v218, v218, v219")
    A("s_nop 0"); A("v_mov_b32 v217, v216"); A("v_mov_b32 v219, v218"); A("s_nop 1")
    A("v_permlane32_swap_b32 v216, v217"); A("v_permlane32_swap_b32 v218, v219"); A("s_nop 1")
    A("v_add_f32 v216, v216, v217"); A("v_add_f32 v218, v218, v219")
    A("v_mul_f32 v216, 0x3acccccd, v216"); A("v_mul_f32 v218, 0x3acccccd, v218")
    A("v_fma_f32 v218, -v216, v216, v218"); A("v_max_f32 v218, 0, v218")
    A("v_cvt_pk_bf16_f32 v217, v216, v218")
    A("v_lshlrev_b32 v216, 16, v217"); A("v_and_b32 v218, 0xffff0000, v217")
    A("v_add_f32 v218, 0x3727c5ac, v218"); A("v_cvt_pk_bf16_f32 v218, v218, v218"); A("v_lshlrev_b32 v218, 16, v218")
    A("v_sqrt_f32 v218, v218"); A("s_nop 0"); A("v_cvt_pk_bf16_f32 v218, v218, v218"); A("v_lshlrev_b32 v218, 16, v218")
    A("v_rcp_f32 v220, v218"); A("s_nop 0"); A("v_mul_f32 v221, v216, v220"); A("v_sub_f32 v221, 0, v221")
    Ls = A.newlabel("nost")
    A("s_cmp_lg_u32 s31, 0"); A(f"s_cbranch_scc1 {Ls}")
    A(f"buffer_store_dwordx2 v[220:221], v238, s[44:47], s58 offen{st}")
    A.label(Ls)
    A("s_mov_b32 s61, 0xffff0000")
    def norm(s):
        L = []
        for d in (0, 2):
            r = X0 + 4 * s + d
            L += [f"v_lshlrev_b32 v240, 16, v{r}", f"v_and_b32 v241, s61, v{r}", f"v_lshlrev_b32 v242, 16, v{r+1}", f"v_and_b32 v243, s61, v{r+1}",
                  "v_fma_f32 v240, v240, v220, v221", "v_fma_f32 v241, v241, v220, v221", "v_fma_f32 v242, v242, v220, v221", "v_fma_f32 v243, v243, v220, v221",
                  f"v_cvt_pk_bf16_f32 v{r}, v240, v241", f"v_cvt_pk_bf16_f32 v{r+1}, v242, v243"]
        return L
    for x in norm(0): A(x)
    A.vmwait("w0")
    A("s_barrier")
    C["stamp"](A, 3)
    NK = 40 - LASTN
    order = [(k, j) for k in range(NK) for j in range(9)] + [(k, j) for j in range(9) for k in range(NK, 40)]
    def rd(m):
        k, j = order[m]; p = POOL + 4 * (m % 9); base = 233 + (k // 4) % 4; off = (k % 4) * 4608 + 32 * j
        return [f"ds_read_b64_tr_b16 {ar(p,2)}, v{base} offset:{off}", f"ds_read_b64_tr_b16 {ar(p+2,2)}, v{base} offset:{off+1152}"]
    for m in range(6):
        for x in rd(m): A(x)
    def epi(j):
        L = []; T = X0 + (j & 1) * 40; G, U, P = T, T + 8, T + 16
        if j >= 3:
            for i in range(16): L.append(f"v_accvgpr_read_b32 v{T+i}, a{16*(j-3)+i}")
            g = lambda i: G + i; u = lambda i: U + i
        else:
            g = lambda i: ACCV + 16 * j + i; u = lambda i: ACCV + 16 * j + 8 + i
        for i in range(8): L.append(f"v_mul_f32 v{G+i}, 0xbfb8aa3b, v{g(i)}")
        for i in range(8): L.append(f"v_exp_f32 v{G+i}, v{G+i}")
        for i in range(8): L.append(f"v_add_f32 v{G+i}, 1.0, v{G+i}")
        for i in range(8): L.append(f"v_rcp_f32 v{G+i}, v{G+i}")
        for i in range(8): L.append(f"v_mul_f32 v{G+i}, v{G+i}, v{u(i)}")
        for i in range(4): L.append(f"v_cvt_pk_bf16_f32 v{P+i}, v{G+2*i}, v{G+2*i+1}")
        L.append((f"buffer_store_dwordx4 {vr(P,4)}, v237, s[40:43], {'s56' if j<8 else 's57'} offen offset:{(j%8)*512}{st}", "h"))
        return L
    nq = []
    for s in range(1, 40): nq += norm(s)
    nrate = len(nq) / (NK * 9 - 4); ndone = 0
    dq = []; eq = []
    for m, (k, j) in enumerate(order):
        if m < NK * 9 and j == 0 and k % 4 == 2:
            s = k // 4
            if s + 1 <= 9:
                last = (LASTN == 8 and s == 7)
                A.vmwait("w9" if last else f"w{s+1}")
                A("s_barrier")
                if 1 <= s <= 6: dq = wdma(s + 3)
        if m % 3 == 0: A(f"s_waitcnt lgkmcnt({6 if m + 3 < 360 else 0})")
        c = accreg(j)
        A(f"v_mfma_f32_32x32x16_bf16 {c}, {ar(POOL+4*(m%9),4)}, {vr(X0+4*k,4)}, {c if k else 0}")
        if m + 6 < 360:
            for x in rd(m + 6): A(x)
        if dq:
            x = dq.pop(0)
            if isinstance(x, str) and x.startswith("s_mov"): A(x); x = dq.pop(0)
            A(x); y = dq.pop(0)
            if ndone < len(nq): A(nq[ndone]); ndone += 1
            else: A("s_nop 0")
            emit(A, y[1])
        tgt = min(len(nq), int((m + 1) * nrate) + 1)
        while ndone < tgt: A(nq[ndone]); ndone += 1
        if m >= NK * 9:
            kk = k - NK
            if kk == 0:
                for x in eq: emit(A, x)
                eq = (["s_nop 3"] if j == 8 else []) + epi(j - 1) if j > 0 else []
                ne = len(eq)
            S = 3 if LASTN == 8 else 2
            if kk >= S:
                keep = ne - (kk - S + 1) * ne // (LASTN - S)
                while len(eq) > keep: emit(A, eq.pop(0))
    A("s_nop 7"); A("s_nop 3")
    for x in epi(8): emit(A, x)
```

```python
from base import *
WREG, YT = 35840, 143360
def g2_early(A, C):
    A.srd(32, P_WD, 2211840); A.srd(36, P_WS, 7077888, WS_H); A.srd(40, P_WS, NB, WS_YT)
    A.srd(44, P_Q, NB); A.srd(48, P_WS, 16384, WS_ST); A.srd(52, P_OUT, NB)
    A("s_mul_i32 s56, s31, 160")
    for i in range(5):
        A(f"v_add_u32 v2, {64*i}, v0")
        A("v_mul_u32_u24 v3, 6554, v2"); A("v_lshrrev_b32 v3, 16, v3")
        A("v_mul_u32_u24 v4, 10, v3"); A("v_sub_u32 v4, v2, v4")
        A("v_and_b32 v5, 19, v3"); A("v_bfe_u32 v6, v3, 2, 1"); A("v_lshl_add_u32 v5, v6, 3, v5"); A("v_bfe_u32 v6, v3, 3, 1"); A("v_lshl_add_u32 v5, v6, 2, v5")
        A("v_mul_u32_u24 v5, 1280, v5"); A(f"v_lshl_add_u32 v{128+i}, v4, 4, v5")
    A("s_mul_i32 s57, s3, 40960"); A("s_add_u32 s57, s57, s56")
    A(f"s_mul_i32 s58, s3, {WREG}")
    A("v_lshlrev_b32 v133, 4, v0")
    for nt in range(1, 4): A(f"v_add_u32 v{133+nt}, {nt*55296}, v133")
    A("s_mul_i32 s59, s30, 221184"); A("s_lshl_b32 s60, s3, 10"); A("s_add_u32 s59, s59, s60")
    A("s_cmp_lt_u32 s3, 2"); A("s_cselect_b32 s61, 0, 0x40000000")
    A("v_lshrrev_b32 v2, 4, v0"); A("v_bfe_u32 v3, v0, 2, 2"); A("v_and_b32 v4, 3, v0")
    A("v_lshrrev_b32 v5, 1, v2"); A("v_lshl_add_u32 v5, v5, 4, v3"); A("v_and_b32 v6, 1, v2"); A("v_lshl_add_u32 v5, v6, 2, v5")
    A("v_mul_u32_u24 v5, 160, v5"); A("v_lshl_add_u32 v5, v4, 3, v5"); A("v_add_u32 v137, s58, v5")
    A("v_lshl_add_u32 v5, v2, 2, v3"); A("v_bfe_u32 v6, v5, 1, 2"); A("v_lshlrev_b32 v6, 1, v6")
    A("v_lshrrev_b32 v7, 1, v4"); A("s_lshl_b32 s60, s3, 1"); A("v_add_u32 v7, s60, v7"); A("v_xor_b32 v7, v7, v6"); A("v_lshlrev_b32 v7, 4, v7")
    A("v_lshl_add_u32 v7, v5, 7, v7"); A("v_and_b32 v6, 1, v4"); A("v_lshl_add_u32 v7, v6, 3, v7"); A(f"v_add_u32 v138, {YT}, v7")
    A("v_and_b32 v5, 15, v0"); A("v_mul_u32_u24 v5, 336, v5"); A("v_lshl_add_u32 v5, v2, 4, v5"); A("v_add_u32 v5, 20480, v5"); A("v_add_u32 v139, s58, v5")
    A("v_add_u32 v140, s58, v133")
    A("s_mul_i32 s60, s3, 5120"); A("v_add_u32 v141, s60, v133"); A(f"v_add_u32 v142, {2*WREG}, v141")
    A("s_lshl_b32 s62, s30, 6"); A("s_lshl_b32 s60, s3, 4"); A("s_add_u32 s62, s62, s60")
    A("s_mul_i32 s63, s62, 1280"); A("s_add_u32 s63, s63, s56"); A("s_lshl_b32 s62, s62, 3")
    for rr in range(3):
        A(f"v_add_u32 v2, {64*rr}, v0")
        A("v_mul_u32_u24 v3, 6554, v2"); A("v_lshrrev_b32 v3, 16, v3"); A("v_mul_u32_u24 v4, 10, v3"); A("v_sub_u32 v4, v2, v4")
        A("v_and_b32 v5, 9, v3"); A("v_bfe_u32 v6, v3, 1, 1"); A("v_lshl_add_u32 v5, v6, 2, v5"); A("v_bfe_u32 v6, v3, 2, 1"); A("v_lshl_add_u32 v5, v6, 1, v5")
        A(f"v_lshlrev_b32 v{149+rr}, 3, v5")
        A("v_mul_u32_u24 v5, 1280, v5"); A(f"v_lshl_add_u32 v{143+rr}, v4, 4, v5")
        A("v_min_u32 v3, 15, v3"); A("v_mul_u32_u24 v3, 336, v3"); A("v_lshl_add_u32 v3, v4, 5, v3"); A("v_add_u32 v3, 20480, v3"); A(f"v_add_u32 v{146+rr}, s58, v3")
    A("v_cmp_gt_u32 vcc, 32, v0"); A("v_mov_b32 v2, 0x40000000"); A("s_nop 0"); A("v_cndmask_b32 v145, v2, v145, vcc")
    A("v_lshrrev_b32 v2, 3, v0"); A("v_bfe_u32 v3, v0, 4, 2"); A("v_lshlrev_b32 v3, 1, v3"); A("v_and_b32 v4, 7, v0"); A("v_xor_b32 v4, v4, v3")
    A("v_lshlrev_b32 v4, 4, v4"); A("v_lshl_add_u32 v152, v2, 12, v4")
    A("s_mul_i32 s64, s31, 327680"); A("s_lshl_b32 s60, s30, 7"); A("s_add_u32 s64, s64, s60"); A("s_lshl_b32 s60, s3, 15"); A("s_add_u32 s64, s64, s60")
    A("s_lshl_b32 s65, s3, 10"); A(f"s_add_u32 s65, s65, {YT}")
def wd(i):
    L = [f"s_add_u32 s66, s57, {i*163840}"]
    for q in range(5):
        L.append(f"s_add_u32 m0, s58, {(i%7)*5120+q*1024}")
        L.append("s_nop 0")
        L.append((f"buffer_load_dwordx4 v{128+q}, s[32:35], s66 offen lds", f"s{i}"))
    return L
def hl(C, i):
    L = [f"s_add_u32 s67, s59, {i*4096}"]
    if i == 13: L.append("s_add_u32 s67, s67, s61")
    for nt in range(4):
        L.append((f"buffer_load_dwordx4 {ar(16*i+4*nt,4)}, v{133+nt}, s[36:39], s67 offen{C['ld']}", f"s{i}"))
    return L
def g2_w(A, C, n):
    for i in range(n):
        for x in wd(i): emit(A, x)
def g2_main(A, C, wdone=0):
    ld = C["ld"]; NPRE = 6
    for i in range(NPRE):
        if i >= wdone:
            for x in wd(i): emit(A, x)
        for x in hl(C, i): emit(A, x)
    ACC, FA = 8, [88, 108]
    def rd(i):
        L = []
        for mt in range(5):
            o = (i % 7) * 5120 + 32 * mt
            L.append(f"ds_read_b64_tr_b16 {vr(FA[i&1]+4*mt,2)}, v137 offset:{o}")
            L.append(f"ds_read_b64_tr_b16 {vr(FA[i&1]+4*mt+2,2)}, v137 offset:{o+1280}")
        return L
    misc = []
    for q in range(3):
        misc += [f"s_add_u32 m0, s65, {q*4096}", f"s_add_u32 s66, s64, {q*131072}"]
        if q == 2: misc += ["s_add_u32 s66, s66, s61"]
        misc += [(f"buffer_load_dwordx4 v152, s[40:43], s66 offen lds{ld}", "y")]
    for rr in range(3):
        misc += [(f"buffer_load_dwordx4 {vr(156+4*rr,4)}, v{143+rr}, s[44:47], s63 offen", "y"),
                 (f"buffer_load_dwordx2 {vr(168+2*rr,2)}, v{149+rr}, s[48:51], s62 offen{ld}", "y")]
    A.vmwait("s0")
    C["stamp"](A, 6)
    for x in rd(0): A(x)
    for i in range(14):
        A("s_waitcnt lgkmcnt(0)")
        F = []
        if i + 1 < 14: F += [lambda t=f"s{i+1}": A.vmwait(t)] + rd(i + 1)
        n = i + NPRE
        if n < 14: F += (wd(n) if n >= wdone else []) + hl(C, n)
        if n == 14: F += misc
        M = []
        for nt in range(4):
            for mt in range(5):
                c = vr(ACC + 4 * (nt * 5 + mt), 4)
                M.append([f"v_mfma_f32_16x16x32_bf16 {c}, {vr(FA[i&1]+4*mt,4)}, {ar(16*i+4*nt,4)}, {c if i else 0}"])
        rest = interleave(A, M, F, rate=max(1.0, len(F) / 19))
        for x in rest: emit(A, x)
    C["stamp"](A, 7)
    A("s_nop 7")
    for t in range(20):
        A(f"ds_write_b128 v140, {vr(ACC+4*t,4)} offset:{t*1024}")
    A.vmwait("y")
    A("s_waitcnt lgkmcnt(0)")
    A("s_barrier")
    for w in range(4):
        for mt in range(5):
            A(f"ds_read_b128 {vr(ACC+4*(w*5+mt),4)}, v{141+(w>>1)} offset:{(w&1)*WREG+mt*1024}")
    Y = 88
    for mt in range(5):
        A(f"ds_read_b64_tr_b16 {vr(Y+2*mt,2)}, v138 offset:{mt*2048}")
    A("s_waitcnt lgkmcnt(15)")
    for i in range(0, 20, 2): A(f"v_pk_add_f32 {vr(ACC+i,2)}, {vr(ACC+i,2)}, {vr(ACC+20+i,2)}")
    A("s_waitcnt lgkmcnt(5)")
    for i in range(0, 20, 2): A(f"v_pk_add_f32 {vr(ACC+40+i,2)}, {vr(ACC+40+i,2)}, {vr(ACC+60+i,2)}")
    for i in range(0, 20, 2): A(f"v_pk_add_f32 {vr(ACC+i,2)}, {vr(ACC+i,2)}, {vr(ACC+40+i,2)}")
    E, YF = ACC + 20, ACC + 40
    for i in range(20): A(f"v_mul_f32 v{E+i}, 0xbfb8aa3b, v{ACC+i}")
    for i in range(20): A(f"v_exp_f32 v{E+i}, v{E+i}")
    A("s_mov_b32 s66, 0xffff0000")
    A("s_waitcnt lgkmcnt(0)")
    for i in range(10):
        A(f"v_lshlrev_b32 v{YF+2*i}, 16, v{Y+i}"); A(f"v_and_b32 v{YF+2*i+1}, s66, v{Y+i}")
    for i in range(20): A(f"v_add_f32 v{E+i}, 1.0, v{E+i}")
    for i in range(20): A(f"v_rcp_f32 v{E+i}, v{E+i}")
    for i in range(0, 20, 2): A(f"v_pk_mul_f32 {vr(ACC+i,2)}, {vr(ACC+i,2)}, {vr(YF+i,2)}")
    for i in range(0, 20, 2): A(f"v_pk_mul_f32 {vr(ACC+i,2)}, {vr(ACC+i,2)}, {vr(E+i,2)}")
    for mt in range(5): A(f"ds_write_b128 v139, {vr(ACC+4*mt,4)} offset:{64*mt}")
    A("s_waitcnt lgkmcnt(0)")
    Z, XF = 32, 60
    for rr in range(3):
        A(f"ds_read_b128 {vr(Z+8*rr,4)}, v{146+rr}"); A(f"ds_read_b128 {vr(Z+8*rr+4,4)}, v{146+rr} offset:16")
    for rr in range(3):
        xf = XF + 8 * rr; z = Z + 8 * rr
        for d in range(4):
            A(f"v_lshlrev_b32 v{xf+2*d}, 16, v{156+4*rr+d}"); A(f"v_and_b32 v{xf+2*d+1}, s66, v{156+4*rr+d}")
        for i in range(8): A(f"v_fma_f32 v{96+i}, v{xf+i}, v{168+2*rr}, v{169+2*rr}")
        A(f"s_waitcnt lgkmcnt({4-2*rr})")
        for i in range(8): A(f"v_fma_f32 v{z+i}, v{96+i}, v{z+i}, v{xf+i}")
        for d in range(4): A(f"v_cvt_pk_bf16_f32 v{156+4*rr+d}, v{z+2*d}, v{z+2*d+1}")
        A.vmop(f"buffer_store_dwordx4 {vr(156+4*rr,4)}, v{143+rr}, s[52:55], s63 offen", "o")
```

```python
import sys, json
from base import *
import p_conv, p_g1, p_g2
NAME = "recurrent_scan__ssm_conv_h3__glu_gated_glu__prompt"
def mkstamp(on):
    def stamp(A, idx, real=False):
        if not on: return
        A("s_memrealtime s[92:93]" if real else "s_memtime s[92:93]")
        A("s_waitcnt lgkmcnt(0)")
        A(f"v_writelane_b32 v255, s92, {idx}")
    return stamp
def head(A, name, nwg, C):
    A.L.append(f".text\n.globl {name}\n.p2align 8\n.type {name},@function\n{name}:")
    A("s_load_dwordx16 s[4:19], s[0:1], 0"); A("s_load_dwordx8 s[20:27], s[0:1], 64"); A("s_load_dwordx2 s[28:29], s[0:1], 96")
    A(f"s_cmp_ge_u32 s2, {nwg}"); A(f"s_cbranch_scc1 {name}_end")
    A("v_mov_b32 v1, v0"); A("v_lshrrev_b32 v2, 6, v0"); A("v_and_b32 v0, 63, v0"); A("v_readfirstlane_b32 s3, v2")
    if C["diag"]: A("v_mov_b32 v255, 0")
    C["stamp"](A, 14, True); C["stamp"](A, 0)
    A("s_waitcnt lgkmcnt(0)")
def tail(A, name, C, knum, nv, acc):
    if C["diag"]:
        A("s_waitcnt vmcnt(0)")
        C["stamp"](A, 13); C["stamp"](A, 15, True)
        A.srd(88, P_WS, 0x100000, WS_DIAG + knum * 0x40000)
        A("s_lshl_b32 s92, s2, 2"); A("s_add_u32 s92, s92, s3"); A("s_lshl_b32 s92, s92, 8"); A("v_lshlrev_b32 v2, 2, v0")
        A("buffer_store_dword v255, v2, s[88:91], s92 offen")
    A.label(f"{name}_end"); A("s_endpgm")
    A.L.append(f""".section .rodata,"a"
.p2align 6
.amdhsa_kernel {name}
  .amdhsa_next_free_vgpr {nv}
  .amdhsa_next_free_sgpr 102
  .amdhsa_accum_offset {acc}
  .amdhsa_group_segment_fixed_size 0
  .amdhsa_kernarg_size 104
  .amdhsa_user_sgpr_count 2
  .amdhsa_user_sgpr_kernarg_segment_ptr 1
  .amdhsa_system_sgpr_workgroup_id_x 1
.end_amdhsa_kernel""")
def map1(A, C, Lconv):
    Cn = C.get("g1c", 6); R = 24 // Cn; per = 12 // Cn
    A("s_and_b32 s94, s2, 7"); A("s_lshr_b32 s95, s2, 3")
    A("s_lshl_b32 s30, s94, 3"); A("s_add_u32 s30, s30, s95")
    A("s_cmp_lt_u32 s95, 8"); A(f"s_cbranch_scc1 {Lconv}")
    A("s_sub_u32 s95, s95, 8")
    sh = {3: 9, 6: 10, 12: 11}[Cn]; lp = {1: 0, 2: 1, 4: 2}[per]
    A("s_mul_i32 s30, s95, 171"); A(f"s_lshr_b32 s30, s30, {sh}")
    A(f"s_mul_i32 s31, s30, {Cn}"); A("s_sub_u32 s31, s95, s31")
    A(f"s_lshr_b32 s96, s94, {lp}"); A(f"s_mul_i32 s96, s96, {R}"); A("s_add_u32 s30, s30, s96")
    A(f"s_and_b32 s96, s94, {per-1}"); A(f"s_mul_i32 s96, s96, {Cn}"); A("s_add_u32 s31, s31, s96")
def map2(A, C):
    A("s_and_b32 s94, s2, 7"); A("s_lshr_b32 s95, s2, 3")
    Cn = C.get("g2c", 8); lc = {8: 3, 4: 2, 2: 1}[Cn]; lp = 3 - lc
    A(f"s_lshr_b32 s30, s95, {lc}"); A(f"s_and_b32 s31, s95, {Cn-1}")
    A(f"s_lshr_b32 s96, s94, {lp}"); A(f"s_mul_i32 s96, s96, {32//Cn}"); A("s_add_u32 s30, s30, s96")
    A(f"s_and_b32 s96, s94, {(1<<lp)-1}"); A(f"s_lshl_b32 s96, s96, {lc}"); A("s_add_u32 s31, s31, s96")
def build(C):
    C.setdefault("diag", 0); C["stamp"] = mkstamp(C["diag"])
    mode = C.get("mode", 3)
    hdr = open("cdna_kernels/" + NAME + ".s.ref").read().split("; Override launch")[0]
    out = hdr
    A = Asm()
    if mode == 3:
        C.setdefault("st", ""); C.setdefault("ld", "")
        out += "; @launch kernel=kv_kernel grid=(64,1,1) block=(256,1,1) lds=112000\n"
        out += "; @launch kernel=ph1_kernel grid=(256,1,1) block=(256,1,1) lds=163840\n"
        out += "; @launch kernel=ph2_kernel grid=(256,1,1) block=(256,1,1) lds=163840\n"
        for i in range(C.get("extra", 0)): out += "; @launch kernel=nop_kernel grid=(256,1,1) block=(256,1,1) lds=0\n"
        head(A, "kv_kernel", 64, C); A("s_mov_b32 s30, s2")
        for _ in p_conv.kvprep(A, C): pass
        tail(A, "kv_kernel", C, 0, 256, 256); A.vm = []
        head(A, "ph1_kernel", 256, C); map1(A, C, "ph1_conv")
        p_g1.g1(A, C); A("s_branch ph1_fin"); A.vm = []
        A.label("ph1_conv"); p_conv.conv_early(A, C); p_conv.conv_pads(A, C); p_conv.conv_main(A, C)
        A.label("ph1_fin"); tail(A, "ph1_kernel", C, 1, 392, 256); A.vm = []
        head(A, "ph2_kernel", 256, C); map2(A, C); p_g2.g2_early(A, C); p_g2.g2_main(A, C)
        tail(A, "ph2_kernel", C, 2, 480, 256)
        if C.get("extra", 0):
            C2 = dict(C); C2["diag"] = 0; C2["stamp"] = mkstamp(0)
            head(A, "nop_kernel", 256, C2); tail(A, "nop_kernel", C2, 3, 32, 32)
    else:
        import fused
        out += fused.build(A, C, head, tail, map1, map2, NAME)
    out += '.amdgcn_target "amdgcn-amd-amdhsa--gfx950"\n' + A.text()
    return out
if __name__ == "__main__":
    C = {}
    for a in sys.argv[2:]:
        k, v = a.split("="); C[k] = int(v) if v.lstrip("-").isdigit() else v.replace("_", " ")
    open(sys.argv[1], "w").write(build(C))
```

```python
from base import *
import p_conv, p_g1, p_kv
from p_kv import WS_MB, WS_KMB, poll
WREG = 40960
WA = 244
def early2(A):
    for i in range(5):
        A(f"v_add_u32 v2, {64*i}, v0")
        A("v_mul_u32_u24 v3, 6554, v2"); A("v_lshrrev_b32 v3, 16, v3")
        A("v_mul_u32_u24 v4, 10, v3"); A("v_sub_u32 v4, v2, v4")
        A("v_and_b32 v5, 19, v3"); A("v_bfe_u32 v6, v3, 2, 1"); A("v_lshl_add_u32 v5, v6, 3, v5"); A("v_bfe_u32 v6, v3, 3, 1"); A("v_lshl_add_u32 v5, v6, 2, v5")
        A("v_mul_u32_u24 v5, 1280, v5"); A(f"v_lshl_add_u32 v{WA+i}, v4, 4, v5")
def flagaddr(A, nl, sh, sreg):
    A(f"v_lshlrev_b32 v2, {sh}, v0"); A(f"v_add_u32 v2, s{sreg}, v2"); A("v_mov_b32 v3, 0x40000000")
    A(f"v_cmp_gt_u32 vcc, {nl}, v0"); A("s_nop 0"); A("v_cndmask_b32 v249, v3, v2, vcc")
def wd(i):
    L = [f"s_add_u32 s66, s57, {i*163840}"]
    for q in range(5):
        L.append(f"s_add_u32 m0, s58, {(i%8)*5120+q*1024}")
        L.append("s_nop 0")
        L.append((f"buffer_load_dwordx4 v{WA+q}, s[32:35], s66 offen lds", f"w{i}"))
    return L
def hl(C, i):
    L = [f"s_add_u32 s67, s59, {i*4096}"]
    if i == 13: L.append("s_add_u32 s67, s67, s61")
    for nt in range(4):
        L.append((f"buffer_load_dwordx4 {ar(16*i+4*nt,4)}, v{133+nt}, s[36:39], s67 offen{C['ld']}", f"h{i}"))
    return L
def trans(A, C, map2, tag):
    map2(A, C)
    A.srd(32, P_WD, 2211840); A.srd(68, P_WS, 0x14000, WS_MB)
    A("s_mul_i32 s56, s31, 160"); A("s_mul_i32 s57, s3, 40960"); A("s_add_u32 s57, s57, s56"); A(f"s_mul_i32 s58, s3, {WREG}")
    A("v_mov_b32 v250, s100")
    for i in range(C.get("nw1", 2)):
        for x in wd(i): emit(A, x)
    A.vmwait(tag)
    A.vmop("buffer_store_dword v250, v249, s[68:71], 0 offen sc1", "fl")
    C["stamp"](A, 8)
def setup2(A):
    L = []; A = L.append
    def srd(d, base, size, off=None):
        t = Asm(); t.srd(d, base, size, off); L.extend(x.strip() for x in t.L)
    srd(36, P_WS, 7077888, WS_H); srd(40, P_WS, NB, WS_YT); srd(44, P_Q, NB); srd(48, P_WS, 16384, WS_ST); srd(52, P_OUT, NB)
    A("v_lshlrev_b32 v133, 4, v0")
    for nt in range(1, 4): A(f"v_add_u32 v{133+nt}, {nt*55296}, v133")
    A("s_mul_i32 s59, s30, 221184"); A("s_lshl_b32 s60, s3, 10"); A("s_add_u32 s59, s59, s60")
    A("s_cmp_lt_u32 s3, 2"); A("s_cselect_b32 s61, 0, 0x40000000")
    A("v_lshrrev_b32 v2, 4, v0"); A("v_bfe_u32 v3, v0, 2, 2"); A("v_and_b32 v4, 3, v0")
    A("v_lshrrev_b32 v5, 1, v2"); A("v_lshl_add_u32 v5, v5, 4, v3"); A("v_and_b32 v6, 1, v2"); A("v_lshl_add_u32 v5, v6, 2, v5")
    A("v_mul_u32_u24 v5, 160, v5"); A("v_lshl_add_u32 v5, v4, 3, v5"); A("v_add_u32 v137, s58, v5")
    A("v_lshl_add_u32 v5, v2, 2, v3"); A("v_bfe_u32 v6, v5, 1, 2"); A("v_lshlrev_b32 v6, 1, v6")
    A("v_lshrrev_b32 v7, 1, v4"); A("s_lshl_b32 s60, s3, 1"); A("v_add_u32 v7, s60, v7"); A("v_xor_b32 v7, v7, v6"); A("v_lshlrev_b32 v7, 4, v7")
    A("v_and_b32 v6, 7, v5"); A("v_lshl_add_u32 v7, v6, 7, v7"); A("v_lshrrev_b32 v6, 3, v5"); A(f"v_mul_u32_u24 v6, {WREG}, v6"); A("v_add_u32 v7, v7, v6")
    A("v_and_b32 v6, 1, v4"); A("v_lshl_add_u32 v138, v6, 3, v7"); A(f"v_add_u32 v153, {2*WREG}, v138")
    A("v_and_b32 v5, 15, v0"); A("v_mul_u32_u24 v5, 336, v5"); A("v_lshl_add_u32 v5, v2, 4, v5"); A("v_add_u32 v5, 20480, v5"); A("v_add_u32 v139, s58, v5")
    A("v_add_u32 v140, s58, v133")
    A("s_mul_i32 s60, s3, 5120"); A("v_add_u32 v141, s60, v133"); A(f"v_add_u32 v142, {2*WREG}, v141")
    A("s_lshl_b32 s62, s30, 6"); A("s_lshl_b32 s60, s3, 4"); A("s_add_u32 s62, s62, s60")
    A("s_mul_i32 s63, s62, 1280"); A("s_add_u32 s63, s63, s56"); A("s_lshl_b32 s62, s62, 3")
    for rr in range(3):
        A(f"v_add_u32 v2, {64*rr}, v0")
        A("v_mul_u32_u24 v3, 6554, v2"); A("v_lshrrev_b32 v3, 16, v3"); A("v_mul_u32_u24 v4, 10, v3"); A("v_sub_u32 v4, v2, v4")
        A("v_and_b32 v5, 9, v3"); A("v_bfe_u32 v6, v3, 1, 1"); A("v_lshl_add_u32 v5, v6, 2, v5"); A("v_bfe_u32 v6, v3, 2, 1"); A("v_lshl_add_u32 v5, v6, 1, v5")
        A(f"v_lshlrev_b32 v{149+rr}, 3, v5")
        A("v_mul_u32_u24 v5, 1280, v5"); A(f"v_lshl_add_u32 v{143+rr}, v4, 4, v5")
        A("v_min_u32 v3, 15, v3"); A("v_mul_u32_u24 v3, 336, v3"); A("v_lshl_add_u32 v3, v4, 5, v3"); A("v_add_u32 v3, 20480, v3"); A(f"v_add_u32 v{146+rr}, s58, v3")
    A("v_cmp_gt_u32 vcc, 32, v0"); A("v_mov_b32 v2, 0x40000000"); A("s_nop 0"); A("v_cndmask_b32 v145, v2, v145, vcc")
    A("v_lshrrev_b32 v2, 3, v0"); A("v_bfe_u32 v3, v0, 4, 2"); A("v_lshlrev_b32 v3, 1, v3"); A("v_and_b32 v4, 7, v0"); A("v_xor_b32 v4, v4, v3")
    A("v_lshlrev_b32 v4, 4, v4"); A("v_lshl_add_u32 v152, v2, 12, v4")
    A("s_mul_i32 s64, s31, 327680"); A("s_lshl_b32 s60, s30, 7"); A("s_add_u32 s64, s64, s60"); A("s_lshl_b32 s60, s3, 15"); A("s_add_u32 s64, s64, s60")
    A("s_add_u32 s65, s58, 30720")
    A("s_lshl_b32 s72, s30, 3"); A("s_add_u32 s72, s72, s31"); A("s_lshl_b32 s72, s72, 8")
    A("v_lshlrev_b32 v154, 2, v0")
    A("s_mov_b32 s74, 0xffffff"); A("s_mov_b32 s75, 0"); A("s_mov_b32 s76, 0"); A("s_mov_b32 s77, -1")
    O = []
    for x in L:
        if x.startswith(("s_addc", "s_cselect")): O[-1] += "\n    " + x
        else: O.append(x)
    return O
def g2(A, C):
    ld = C["ld"]; ACC = 8
    WR = [("v", 88), ("v", 108), ("v", 176), ("v", 196), ("v", 216), ("a", 224)]
    wreg = lambda i, o, n: vr((WR[i] if i < 6 else WR[i & 1])[1] + o, n, (WR[i] if i < 6 else WR[i & 1])[0])
    def rd(i):
        L = []
        for mt in range(5):
            o = (i % 8) * 5120 + 32 * mt
            L.append(f"ds_read_b64_tr_b16 {wreg(i,4*mt,2)}, v137 offset:{o}")
            L.append(f"ds_read_b64_tr_b16 {wreg(i,4*mt+2,2)}, v137 offset:{o+1280}")
        return L
    n1 = C.get("nw1", 2); su = setup2(A)
    D = []
    for i in range(n1, 8):
        w = wd(i); D.append([w[0]] + w[1:4]); D += [w[4+3*q:7+3*q] for q in range(4)]
    interleave(A, D, su)
    NPW = C.get("npw", 6)
    def mvw(i):
        A.vmwait(f"w{i}")
        for x in rd(i): A(x)
        A("s_waitcnt lgkmcnt(0)")
        for x in wd(i + 8): emit(A, x)
    for i in range(NPW): mvw(i)
    C["stamp"](A, 9)
    poll(A, 68, "s72", 2, 154, "s[74:75]", 73)
    C["stamp"](A, 10)
    NH = C.get("nh", 8); hq = []
    for i in range(14):
        if i < NH:
            for x in hl(C, i): emit(A, x)
        else: hq.append(hl(C, i))
        if NPW <= i < 6: mvw(i)
    misc = []
    for q in range(3):
        misc += [f"s_add_u32 m0, s65, {q*1024}", f"s_add_u32 s66, s64, {q*131072}"]
        if q == 2: misc += ["s_add_u32 s66, s66, s61"]
        misc += [(f"buffer_load_dwordx4 v152, s[40:43], s66 offen{ld} lds", "y")]
    xs = []
    for rr in range(3):
        xs += [(f"buffer_load_dwordx4 {vr(156+4*rr,4)}, v{143+rr}, s[44:47], s63 offen", "y"),
               (f"buffer_load_dwordx2 {vr(168+2*rr,2)}, v{149+rr}, s[48:51], s62 offen{ld}", "y")]
    YP = C.get("yp", 11)
    for i in range(14):
        A.vmwait(f"h{i}")
        if i == 0: C["stamp"](A, 6)
        if i >= 6: A("s_waitcnt lgkmcnt(0)")
        F = []
        if 6 <= i + 1 < 14: F += [lambda t=f"w{i+1}": A.vmwait(t)] + rd(i + 1)
        if hq: F += hq.pop(0)
        elif xs: F += xs + [("buffer_load_dword v155, v154, s[68:71], s72 offen sc1", "yf")]; xs = []
        if i == YP:
            def chk():
                Lk = A.newlabel("yok"); A.vmwait("yf"); vm = list(A.vm)
                A("v_cmp_ne_u32 vcc, s100, v155"); A("s_and_b64 vcc, vcc, s[76:77]"); A(f"s_cbranch_vccz {Lk}")
                poll(A, 68, "s72", 155, 154, "s[76:77]", 73); A.label(Lk); A.vm = vm
            F += [chk] + misc
        M = []
        for nt in range(4):
            for mt in range(5):
                c = vr(ACC + 4 * (nt * 5 + mt), 4)
                M.append([f"v_mfma_f32_16x16x32_bf16 {c}, {wreg(i,4*mt,4)}, {ar(16*i+4*nt,4)}, {c if i else 0}"])
        rest = interleave(A, M, F, rate=max(1.0, len(F) / 19))
        for x in rest: emit(A, x)
    C["stamp"](A, 7)
    A("s_nop 7")
    for t in range(20):
        A(f"ds_write_b128 v140, {vr(ACC+4*t,4)} offset:{t*1024}")
    A.vmwait("y")
    A("s_waitcnt lgkmcnt(0)")
    A("s_barrier")
    for w in range(4):
        for mt in range(5):
            A(f"ds_read_b128 {vr(ACC+4*(w*5+mt),4)}, v{141+(w>>1)} offset:{(w&1)*WREG+mt*1024}")
    Y = 88
    for mt in range(5):
        A(f"ds_read_b64_tr_b16 {vr(Y+2*mt,2)}, v{153 if mt&1 else 138} offset:{30720+(mt>>1)*1024}")
    A("s_cmp_eq_u32 s3, 0"); A("s_cselect_b32 s72, s72, 0x40000000"); A("s_cmp_eq_u32 s3, 1"); A("s_cselect_b32 s72, s99, s72")
    A("v_mov_b32 v155, s101")
    A("buffer_store_dword v155, v154, s[68:71], s72 offen sc1")
    A("s_waitcnt lgkmcnt(15)")
    for i in range(0, 20, 2): A(f"v_pk_add_f32 {vr(ACC+i,2)}, {vr(ACC+i,2)}, {vr(ACC+20+i,2)}")
    A("s_waitcnt lgkmcnt(5)")
    for i in range(0, 20, 2): A(f"v_pk_add_f32 {vr(ACC+40+i,2)}, {vr(ACC+40+i,2)}, {vr(ACC+60+i,2)}")
    for i in range(0, 20, 2): A(f"v_pk_add_f32 {vr(ACC+i,2)}, {vr(ACC+i,2)}, {vr(ACC+40+i,2)}")
    E, YF = ACC + 20, ACC + 40
    for i in range(20): A(f"v_mul_f32 v{E+i}, 0xbfb8aa3b, v{ACC+i}")
    for i in range(20): A(f"v_exp_f32 v{E+i}, v{E+i}")
    A("s_mov_b32 s66, 0xffff0000")
    A("s_waitcnt lgkmcnt(0)")
    for i in range(10):
        A(f"v_lshlrev_b32 v{YF+2*i}, 16, v{Y+i}"); A(f"v_and_b32 v{YF+2*i+1}, s66, v{Y+i}")
    for i in range(20): A(f"v_add_f32 v{E+i}, 1.0, v{E+i}")
    for i in range(20): A(f"v_rcp_f32 v{E+i}, v{E+i}")
    for i in range(0, 20, 2): A(f"v_pk_mul_f32 {vr(ACC+i,2)}, {vr(ACC+i,2)}, {vr(YF+i,2)}")
    for i in range(0, 20, 2): A(f"v_pk_mul_f32 {vr(ACC+i,2)}, {vr(ACC+i,2)}, {vr(E+i,2)}")
    for mt in range(5): A(f"ds_write_b128 v139, {vr(ACC+4*mt,4)} offset:{64*mt}")
    A("s_waitcnt lgkmcnt(0)")
    Z, XF = 32, 60
    for rr in range(3):
        A(f"ds_read_b128 {vr(Z+8*rr,4)}, v{146+rr}"); A(f"ds_read_b128 {vr(Z+8*rr+4,4)}, v{146+rr} offset:16")
    for rr in range(3):
        xf = XF + 8 * rr; z = Z + 8 * rr
        for d in range(4):
            A(f"v_lshlrev_b32 v{xf+2*d}, 16, v{156+4*rr+d}"); A(f"v_and_b32 v{xf+2*d+1}, s66, v{156+4*rr+d}")
        for i in range(8): A(f"v_fma_f32 v{96+i}, v{xf+i}, v{168+2*rr}, v{169+2*rr}")
        A(f"s_waitcnt lgkmcnt({4-2*rr})")
        for i in range(8): A(f"v_fma_f32 v{z+i}, v{96+i}, v{z+i}, v{xf+i}")
        for d in range(4): A(f"v_cvt_pk_bf16_f32 v{156+4*rr+d}, v{z+2*d}, v{z+2*d+1}")
        A.vmop(f"buffer_store_dwordx4 {vr(156+4*rr,4)}, v{143+rr}, s[52:55], s63 offen", "o")
def build(A, C, head, tail, map1, map2, NAME):
    C.setdefault("st", " sc1"); C.setdefault("ld", "")
    K = NAME + "_kernel"
    head(A, K, 256, C); p_kv.epoch_load(A); map1(A, C, "f_conv")
    A("s_mul_i32 s84, s30, 48"); A("s_lshl_b32 s85, s31, 2"); A("s_add_u32 s84, s84, s85"); A("s_add_u32 s84, s84, s3")
    A("s_mov_b32 s99, 0x40000000")
    C["kvgen"] = p_kv.kvtask(A, C, 1, 84, 84, 64)
    def early(A):
        early2(A)
        A("s_lshr_b32 s85, s48, 1"); A("s_lshl_b32 s85, s85, 11"); A("s_lshl_b32 s86, s31, 3"); A("s_add_u32 s85, s85, s86")
        A("s_and_b32 s86, s3, 1"); A("s_lshl_b32 s86, s86, 2"); A("s_add_u32 s85, s85, s86")
        flagaddr(A, 8, 8, 85)
    C["early"] = early; C["endbar"] = 1
    p_g1.g1(A, C); trans(A, C, map2, "h"); vm = list(A.vm)
    A("s_branch f_join"); A.vm = []
    A.label("f_conv")
    A("s_lshl_b32 s52, s30, 3"); A("s_lshl_b32 s53, s3, 1"); A("s_add_u32 s52, s52, s53"); A("s_add_u32 s52, s52, 768")
    A("s_lshl_b32 s99, s30, 8"); A(f"s_add_u32 s99, s99, {WS_KMB-WS_MB}")
    kv = p_kv.kvtask(A, C, 2, 52, 8, 32); next(kv)
    p_conv.conv_early(A, C)
    next(kv)
    p_conv.conv_pads(A, C); early2(A)
    A("s_lshr_b32 s52, s30, 3"); A("s_lshl_b32 s52, s52, 8"); A("s_and_b32 s53, s30, 7"); A("s_lshl_b32 s53, s53, 4"); A("s_add_u32 s52, s52, s53")
    A("s_lshl_b32 s53, s3, 2"); A("s_add_u32 s52, s52, s53"); A("s_add_u32 s52, s52, 128")
    flagaddr(A, 32, 11, 52)
    next(kv)
    C["stamp"](A, 1)
    A("s_mul_i32 s52, s30, 10"); A("s_add_u32 s53, s52, 9"); A("s_xor_b32 s52, s52, s53"); A("s_lshr_b32 s52, s52, 4")
    A("s_cmp_lg_u32 s52, 0"); A("s_cselect_b32 s55, -1, 0"); A("s_mov_b32 s54, -1")
    A("s_lshl_b32 s52, s30, 8"); A("v_lshlrev_b32 v3, 2, v0")
    poll(A, 32, "s52", 2, 3, "s[54:55]", 53)
    C["stamp"](A, 2)
    p_conv.conv_main(A, C)
    C["stamp"](A, 5)
    A("s_barrier")
    trans(A, C, map2, "yst")
    assert A.vm == vm, (A.vm, vm)
    A.label("f_join")
    g2(A, C)
    tail(A, K, C, 0, 512, 256)
    return "; @launch grid=(256,1,1) block=(256,1,1) lds=163840\n"
```

```python
from base import *
SLOT, UOFF = 37120, 18560
X0 = 8
ACCV = 168
POOL = 96
def accreg(j, n=16, o=0):
    return vr(ACCV + 16 * j + o, n) if j < 3 else ar(16 * (j - 3) + o, n)
def g1(A, C):
    st, LASTN = C["st"], C.get("lastn", 12)
    A.srd(32, P_Q, NB)
    A("s_lshl_b32 s48, s30, 2"); A("s_add_u32 s48, s48, s3")
    A("s_mul_i32 s49, s48, 40960")
    A("s_mul_i32 s50, s3, 40960")
    A("s_mul_i32 s50, s3, 8192")
    kv = C.get("kvgen")
    if kv: next(kv)
    A("v_lshrrev_b32 v2, 4, v0"); A("v_and_b32 v3, 15, v0")
    for i in range(4):
        A(f"v_add_u32 v4, {4*i}, v2"); A("v_xor_b32 v5, v3, v4"); A("v_mul_u32_u24 v4, 1280, v4"); A(f"v_lshl_add_u32 v{216+i}, v5, 4, v4")
    A("s_add_u32 s51, s49, 20480")
    def xdma(c):
        for i in range(8):
            A(f"s_add_u32 m0, s50, {c*32768+i*1024-c*256}"); A("s_nop 0")
            A.vmop(f"buffer_load_dwordx4 v{216+(i&3)}, s[32:35], s{49 if i<4 else 51} offen offset:{c*256} lds", f"x{c}")
    NX0 = C.get("nx0", 3)
    for c in range(NX0): xdma(c)
    A("s_cmp_lt_u32 s3, 2")
    A(f"s_cselect_b32 s36, s{P_WG}, s{P_WU}"); A(f"s_cselect_b32 s37, s{P_WG+1}, s{P_WU+1}")
    A("s_mov_b32 s38, 2211840"); A("s_mov_b32 s39, 0x20000")
    A("s_and_b32 s55, s3, 1"); A("s_mul_i32 s52, s55, 576"); A("s_mul_i32 s53, s55, 9216")
    A("s_lshr_b32 s55, s3, 1"); A(f"s_mul_i32 s55, s55, {UOFF}"); A("s_add_u32 s53, s53, s55")
    A("s_mul_i32 s54, s31, 288")
    for i in range(9):
        A(f"v_add_u32 v2, {64*i}, v0"); A("v_add_u32 v2, s52, v2")
        A("v_mul_u32_u24 v3, 58255, v2"); A("v_lshrrev_b32 v3, 20, v3")
        A("v_mul_u32_u24 v4, 18, v3"); A("v_sub_u32 v4, v2, v4")
        A("v_mul_u32_u24 v3, 3456, v3")
        A(f"v_lshl_add_u32 v{224+i}, v4, 4, v3")
        A(f"v_add_u32 v{224+i}, s54, v{224+i}")
    if C.get("wtouch", 0):
        A("v_lshrrev_b32 v2, 2, v0"); A("v_mul_u32_u24 v2, 3456, v2"); A("v_and_b32 v3, 3, v0"); A("v_min_u32 v3, 2, v3")
        A("v_lshl_add_u32 v2, v3, 7, v2"); A("s_and_b32 s59, s3, 1"); A("s_mul_i32 s59, s59, 55296"); A("s_and_b32 s55, s54, 0xffffff80")
        A("s_add_u32 s59, s59, s55")
        for i in range(C.get("wtouch_n", 8)):
            A.vmop(f"buffer_load_dword v{244+i}, v2, s[36:39], s59 offen", "wt")
            A("s_add_u32 s59, s59, 110592")
    A("v_and_b32 v2, 31, v0"); A("v_lshrrev_b32 v3, 5, v0"); A("v_and_b32 v4, 15, v0"); A("v_xor_b32 v4, v4, v3")
    A("v_lshlrev_b32 v5, 8, v2"); A("v_add_u32 v5, s50, v5")
    for b in range(8):
        A(f"v_xor_b32 v6, {2*b}, v4"); A(f"v_lshl_add_u32 v{ACCV+b}, v6, 4, v5")
    A("v_bfe_u32 v4, v0, 2, 2"); A("v_lshl_add_u32 v4, v3, 3, v4"); A("v_mul_u32_u24 v4, 288, v4")
    A("v_and_b32 v5, 1, v0"); A("v_lshl_add_u32 v4, v5, 4, v4"); A("v_bfe_u32 v5, v0, 1, 1"); A("v_lshl_add_u32 v4, v5, 3, v4")
    A("v_bfe_u32 v5, v0, 4, 1"); A(f"v_mul_u32_u24 v5, {UOFF}, v5"); A("v_add_u32 v233, v4, v5")
    for s in range(1, 4): A(f"v_add_u32 v{233+s}, {s*SLOT}, v233")
    A("v_and_b32 v4, 9, v0"); A("v_bfe_u32 v5, v0, 1, 1"); A("v_lshl_add_u32 v4, v5, 2, v4"); A("v_bfe_u32 v5, v0, 2, 1"); A("v_lshl_add_u32 v4, v5, 1, v4")
    A("v_lshlrev_b32 v4, 4, v4"); A("v_lshl_add_u32 v4, v3, 8, v4"); A("v_bfe_u32 v5, v0, 4, 1"); A("v_mul_u32_u24 v5, 55296, v5"); A("v_add_u32 v237, v4, v5")
    A("v_lshlrev_b32 v238, 3, v2")
    A.srd(40, P_WS, 7077888, WS_H); A.srd(44, P_WS, 16384, WS_ST)
    A("s_mul_i32 s56, s48, 110592"); A("s_mul_i32 s57, s31, 4608"); A("s_add_u32 s56, s56, s57"); A("s_add_u32 s57, s56, 4096")
    A("s_lshl_b32 s58, s48, 8")
    if C.get("early"): C["early"](A)
    if kv: next(kv)
    C["stamp"](A, 1)
    def wdma(stage):
        L = [f"s_mov_b32 s59, {stage*221184}"]
        for i in range(9):
            L.append(f"s_add_u32 m0, s53, {(stage%4)*SLOT+i*1024}")
            L.append(["s_nop 0", (f"buffer_load_dwordx4 v{224+i}, s[36:39], s59 offen lds", f"w{stage}")])
        return L
    def flat(L):
        o = []
        for x in L: o += x if isinstance(x, list) else [x]
        return o
    S1, S2 = [220, 221], [222, 223]
    for r in S1 + S2: A(f"v_mov_b32 v{r}, 0")
    A("s_mov_b32 s60, 0x3f803f80")
    NW0 = C.get("nw0", 2)
    def stats(c):
        return [[f"v_dot2c_f32_bf16 v{S1[i&1]}, s60, v{X0+i}", f"v_dot2c_f32_bf16 v{S2[i&1]}, v{X0+i}, v{X0+i}"] for i in range(32 * c, 32 * c + 32)]
    XR = C.get("xorder", [0, 1, 2, 3, 4])
    for c in range(5):
        if c + NX0 < 5: xdma(c + NX0)
        if kv and c == C.get('kvf', 1): next(kv)
        A.vmwait(f"x{c}")
        if c == 0: C["stamp"](A, 2)
        if c == 2 or c == 4:
            for b in range(8): A(f"v_add_u32 v{ACCV+b}, 65536, v{ACCV+b}")
        for s in range(8):
            A(f"ds_read_b128 {vr(X0+4*(8*c+s),4)}, v{ACCV+s} offset:{32768*(c&1)}")
        if c > 0:
            for x in stats(c - 1)[:16]: A(x[0]); A(x[1])
        A("s_waitcnt lgkmcnt(0)")
        dm = []
        if c > 0:
            A("s_barrier")
            if c - 1 < NW0:
                w = wdma(c - 1); dm.append(w[0])
                for i in range(9): dm.append(lambda a=w[1+2*i], b=w[2+2*i]: (A(a), A(b[0]), emit(A, b[1])))
            interleave(A, stats(c - 1)[16:], dm)
    for x in stats(4): A(x[0]); A(x[1])
    A("s_nop 2")
    A("v_add_f32 v216, v220, v221"); A("v_add_f32 v218, v222, v223")
    A("s_nop 0"); A("v_mov_b32 v217, v216"); A("v_mov_b32 v219, v218"); A("s_nop 1")
    A("v_permlane32_swap_b32 v216, v217"); A("v_permlane32_swap_b32 v218, v219"); A("s_nop 1")
    A("v_add_f32 v216, v216, v217"); A("v_add_f32 v218, v218, v219")
    A("v_mul_f32 v216, 0x3acccccd, v216"); A("v_mul_f32 v218, 0x3acccccd, v218")
    A("v_fma_f32 v218, -v216, v216, v218"); A("v_max_f32 v218, 0, v218")
    A("v_cvt_pk_bf16_f32 v217, v216, v218")
    A("v_lshlrev_b32 v216, 16, v217"); A("v_and_b32 v218, 0xffff0000, v217")
    A("v_add_f32 v218, 0x3727c5ac, v218"); A("v_cvt_pk_bf16_f32 v218, v218, v218"); A("v_lshlrev_b32 v218, 16, v218")
    A("v_sqrt_f32 v218, v218"); A("s_nop 0"); A("v_cvt_pk_bf16_f32 v218, v218, v218"); A("v_lshlrev_b32 v218, 16, v218")
    A("v_rcp_f32 v220, v218"); A("s_nop 0"); A("v_mul_f32 v221, v216, v220"); A("v_sub_f32 v221, 0, v221")
    Ls = A.newlabel("nost")
    A("s_cmp_lg_u32 s31, 0"); A(f"s_cbranch_scc1 {Ls}")
    A(f"buffer_store_dwordx2 v[220:221], v238, s[44:47], s58 offen{st}")
    A.label(Ls)
    A("s_mov_b32 s61, 0xffff0000")
    A("v_mul_f32 v222, 0xbfb8aa3b, v220")
    nq = []
    for g in range(80):
        r = X0 + 2 * g
        nq += [f"v_lshlrev_b32 v240, 16, v{r}", f"v_and_b32 v241, s61, v{r}", f"v_lshlrev_b32 v242, 16, v{r+1}", f"v_and_b32 v243, s61, v{r+1}",
               "v_sub_f32 v240, v240, v216", "v_sub_f32 v241, v241, v216", "v_sub_f32 v242, v242, v216", "v_sub_f32 v243, v243, v216",
               f"v_cvt_pk_bf16_f32 v{r}, v240, v241", f"v_cvt_pk_bf16_f32 v{r+1}, v242, v243"]
    NP = C.get("npre", 20)
    for x in nq[:NP]: A(x)
    nq = nq[NP:]
    A.vmwait("w0")
    A("s_barrier")
    if C.get("afterbar"): C["afterbar"](A)
    C["stamp"](A, 3)
    NK = 40 - LASTN
    order = [(k, j) for k in range(NK) for j in range(9)] + [(k, j) for j in range(9) for k in range(NK, 40)]
    def rd(m):
        k, j = order[m]; p = POOL + 4 * (m % 9); base = 233 + (k // 4) % 4; off = (k % 4) * 4608 + 32 * j
        return [f"ds_read_b64_tr_b16 {ar(p,2)}, v{base} offset:{off}", f"ds_read_b64_tr_b16 {ar(p+2,2)}, v{base} offset:{off+1152}"]
    for m in range(6):
        for x in rd(m): A(x)
    def epi(j):
        L = []; T = X0 + (j & 1) * 40; G, U, P = T, T + 8, T + 16
        acc = j >= 3
        g = (lambda i: G + i) if acc else (lambda i: ACCV + 16 * j + i)
        u = (lambda i: U + i) if acc else (lambda i: ACCV + 16 * j + 8 + i)
        stg = [lambda i: f"v_accvgpr_read_b32 v{G+i}, a{16*(j-3)+i}" if acc else None,
               lambda i: f"v_mul_f32 v{G+i}, v222, v{g(i)}",
               lambda i: f"v_exp_f32 v{G+i}, v{G+i}",
               lambda i: f"v_accvgpr_read_b32 v{U+i}, a{16*(j-3)+8+i}" if acc else None,
               lambda i: f"v_fma_f32 v{G+i}, v{G+i}, v218, v218",
               lambda i: f"v_rcp_f32 v{G+i}, v{G+i}",
               lambda i: None,
               lambda i: f"v_mul_f32 v{G+i}, v{G+i}, v{u(i)}",
               lambda i: f"v_cvt_pk_bf16_f32 v{P+i//2}, v{G+i-1}, v{G+i}" if i & 1 else None]
        for t in range(8 + len(stg) - 1):
            for q in range(len(stg) - 1, -1, -1):
                i = t - q
                if 0 <= i < 8 and stg[q](i): L.append(stg[q](i))
            if t >= 12: L.append("s_nop 0")
        L.append((f"buffer_store_dwordx4 {vr(P,4)}, v237, s[40:43], {'s56' if j<8 else 's57'} offen offset:{(j%8)*512}{st}", "h"))
        return L
    if C.get("xnonorm"): nq = nq[:20]
    nrate = len(nq) / (NK * 9 - 4); ndone = 0
    lastbar = 0; dq = []; eq = []; DSP = C.get("dsp", 3); nxt = 0; pend = list(range(NW0, 10))
    need = {}
    for m, (k, j) in enumerate(order): need.setdefault(k // 4, max(0, m - 6))
    free = {}
    for m, (k, j) in enumerate(order): free[k // 4] = m + 1
    bars = {}
    for s in range(1, 10):
        pos = [p for p in range(0, NK * 9 + 1, 36) if p <= need[s]][-1] + C.get("boff", 0)
        if s == 1: pos = 18 if NW0 > 1 else 30
        if s > NK // 4 or pos > need[s]: pos = need[s] // 3 * 3
        bars.setdefault(pos, []).append(s)
    for s in range(4, 10): bars.setdefault(free[s - 4] + C.get("boff", 0), [])
    for m, (k, j) in enumerate(order):
        if m in bars:
            if bars[m]:
                assert max(bars[m]) not in pend and not any(isinstance(x, list) and x[1][1] == f"w{max(bars[m])}" for x in dq), (m, bars)
                A.vmwait(f"w{max(bars[m])}")
            A("s_barrier"); lastbar = m
        if not dq and pend and (pend[0] < 4 or (lastbar >= free[pend[0] - 4])):
            cur = pend.pop(0); dq = wdma(cur); nxt = m
        if m == NK * 9: C["stamp"](A, 4)
        if m % 3 == 0: A(f"s_waitcnt lgkmcnt({6 if m + 3 < 360 else 0})")
        c = accreg(j)
        A(f"v_mfma_f32_32x32x16_bf16 {c}, {ar(POOL+4*(m%9),4)}, {vr(X0+4*k,4)}, {c if k else 0}")
        rq = rd(m + 6) if m + 6 < 360 else []
        if m < NK * 9 or not C.get("shadow", 0):
            for x in rq: A(x)
            rq = []
        NMAX = C.get("nmax", 4); nf = NMAX
        if dq and isinstance(dq[0], list):
            emit(A, dq.pop(0)[1]); nf = C.get("ndma", 0)
            nxt = m + (DSP if cur < 9 or LASTN == 8 else 2) - 1
        if dq and m >= nxt:
            x = dq.pop(0)
            if x.startswith("s_mov"): A(x); x = dq.pop(0); nf -= 1
            A(x); nf -= 1
        must = min(len(nq), 20 * ((m + 2) // 9 + 1) - NP) if m + 2 < NK * 9 else len(nq)
        tgt = max(must, min(len(nq), ndone + max(nf, 0), int((m + 1) * nrate * 1.15) + 4))
        while ndone < tgt: A(nq[ndone]); ndone += 1
        if m >= NK * 9:
            kk = k - NK
            if kk == 0:
                for x in eq: emit(A, x)
                eq = (["s_nop 3"] if j == 8 else []) + epi(j - 1) if j > 0 else []
                ne = len(eq)
            S = 3 if LASTN == 8 else 2
            if kk >= S:
                keep = ne - (kk - S + 1) * ne // (LASTN - S)
                while len(eq) > keep:
                    x = eq.pop(0); emit(A, x)
                    if rq and isinstance(x, str) and x[:5] in ("v_exp", "v_rcp"): A(rq.pop(0))
            for x in rq: A(x)
    C["stamp"](A, 5)
    if C.get("endbar"): A("s_barrier")
    A("s_nop 7"); A("s_nop 3")
    for x in epi(8): emit(A, x)
```

```python
from base import *
WS_R, WS_MB, WS_KMB = 0xC08000, 0xC10000, 0xC20000
def epoch_load(A):
    A(f"s_mov_b32 s92, {WS_R}"); A(f"s_load_dword s101, s[{P_WS}:{P_WS+1}], s92")
def epoch_fin(A):
    A("s_mul_i32 s100, s101, 0x9E3779B1"); A("s_add_u32 s100, s100, 0x7F4A7C15")
def kvtask(A, C, W, sT, D, S):
    st = C["st"]; K, V, SH, O = S, S + 4, S + 8, S + 12; sl, sg, so, s2 = S + 16, S + 17, S + 18, S + 19
    A.srd(K, P_K, NB); A.srd(V, P_V, NB); A.srd(SH, P_SH, 5120)
    A(f"s_mul_i32 s{sl}, s{sT}, 52429"); A(f"s_lshr_b32 s{sl}, s{sl}, 21")
    A(f"s_mul_i32 s{sg}, s{sl}, 40"); A(f"s_sub_u32 s{sg}, s{sT}, s{sg}")
    A(f"s_mul_i32 s{so}, s{sl}, 81920"); A(f"s_lshl_b32 s{s2}, s{sg}, 5"); A(f"s_add_u32 s{so}, s{so}, s{s2}")
    A("v_and_b32 v2, 7, v0"); A("v_lshrrev_b32 v3, 3, v0")
    A("v_mul_u32_u24 v5, 10240, v3"); A(f"v_lshl_add_u32 v5, v2, {1+W}, v5"); A(f"v_add_u32 v5, s{so}, v5")
    A("v_subrev_u32 v6, 3840, v5")
    A(f"v_lshlrev_b32 v7, {3+W}, v2"); A(f"s_lshl_b32 s{s2}, s{sg}, 7"); A(f"s_movk_i32 s{so}, 5120")
    ld = "buffer_load_dword" + ("x2" if W == 2 else "")
    b = D; bs = D + 19 * W + (19 * W & 1)
    for h in range(W): A.vmop(f"buffer_load_dwordx4 {vr(bs+4*h,4)}, v7, s[{SH}:{SH+3}], s{s2} offen offset:{16*h}", "kv")
    for i in range(3): A.vmop(f"{ld} {vr(b+W*i,W)}, v6, s[{K}:{K+3}], 0 offen offset:{i*1280}", "kv")
    for i in range(8):
        sof = "0" if i < 4 else f"s{so}"
        A.vmop(f"{ld} {vr(b+W*(3+i),W)}, v5, s[{K}:{K+3}], {sof} offen offset:{(i%4)*1280}", "kv")
        A.vmop(f"{ld} {vr(b+W*(11+i),W)}, v5, s[{V}:{V+3}], {sof} offen offset:{(i%4)*1280}", "kv")
    T = bs + 4 * W
    Kp, Wp, Oo, PK = T, T + 22, T + 30, T + 46
    AD = PK + 8 * W
    A.srd(O, P_WS, NB)
    A(f"v_lshlrev_b32 v{AD}, {12+W}, v3"); A(f"v_lshl_add_u32 v{AD}, v2, 4, v{AD}")
    A("v_sub_u32 v4, 7, v2"); A("v_lshl_add_u32 v4, v4, 3, v3"); A(f"v_lshlrev_b32 v{AD+3}, 2, v4")
    A(f"v_lshrrev_b32 v3, 2, v0"); A(f"v_add_u32 v3, s{sg}, v3"); A("v_lshlrev_b32 v4, 4, v3")
    A("v_mul_u32_u24 v5, 6554, v4"); A("v_lshrrev_b32 v5, 16, v5"); A("v_and_b32 v6, 3, v0"); A("v_add_u32 v5, v5, v6")
    A("v_mul_u32_u24 v6, 10, v5"); A("v_add_u32 v4, 15, v4"); A("v_cmp_le_u32 vcc, v6, v4")
    A(f"v_cmp_gt_u32 s[92:93], {4*W}, v0"); A("v_lshrrev_b32 v6, 4, v6"); A("v_sub_u32 v3, v3, v6")
    A(f"s_and_b64 vcc, vcc, s[92:93]")
    A("v_lshlrev_b32 v5, 8, v5"); A("v_lshl_add_u32 v5, v3, 7, v5"); A(f"s_lshl_b32 s{s2}, s{sl}, 2"); A(f"v_add_u32 v5, s{s2}, v5")
    A("v_mov_b32 v6, 0x40000000"); A(f"v_cndmask_b32 v{AD+1}, v6, v5, vcc")
    A(f"s_sub_u32 s{so}, 31, s{sl}"); A(f"s_lshl_b32 s{so}, s{so}, 7"); A(f"s_lshl_b32 s{s2}, s{sg}, 16"); A(f"s_add_u32 s{so}, s{so}, s{s2}")
    yield "issued"
    A("s_waitcnt lgkmcnt(0)"); epoch_fin(A)
    A(f"s_mov_b32 s{s2}, 0xffff0000")
    A.vmwait("kv")
    for h in range(W):
        for j in range(4):
            for ch in range(2):
                src = bs + 4 * h + ch * 2 + (j >> 1)
                A(f"v_and_b32 v{Wp+2*j+ch}, s{s2}, v{src}" if j & 1 else f"v_lshlrev_b32 v{Wp+2*j+ch}, 16, v{src}")
        for i in range(11):
            A(f"v_lshlrev_b32 v{Kp+2*i}, 16, v{b+W*i+h}"); A(f"v_and_b32 v{Kp+2*i+1}, s{s2}, v{b+W*i+h}")
        for r in range(8): A(f"v_pk_mul_f32 {vr(Oo+2*r,2)}, {vr(Wp+6,2)}, {vr(Kp+2*r,2)}")
        for j in (2, 1, 0):
            for r in range(8): A(f"v_pk_fma_f32 {vr(Oo+2*r,2)}, {vr(Wp+2*j,2)}, {vr(Kp+2*(r+3-j),2)}, {vr(Oo+2*r,2)}")
        for r in range(8):
            A(f"v_lshlrev_b32 v{Kp+2*r}, 16, v{b+W*(11+r)+h}"); A(f"v_and_b32 v{Kp+2*r+1}, s{s2}, v{b+W*(11+r)+h}")
        for r in range(8): A(f"v_pk_mul_f32 {vr(Oo+2*r,2)}, {vr(Oo+2*r,2)}, {vr(Kp+2*r,2)}")
        for ch in range(2):
            p = PK + 8 * h + 4 * ch
            for q in range(4): A(f"v_cvt_pk_bf16_f32 v{p+q}, v{Oo+2*(7-2*q)+ch}, v{Oo+2*(6-2*q)+ch}")
            for q in range(4): A(f"ds_bpermute_b32 v{p+q}, v{AD+3}, v{p+q}")
        for ch in range(2):
            p = PK + 8 * h + 4 * ch
            A(f"s_waitcnt lgkmcnt({4-4*ch})")
            A.vmop(f"buffer_store_dwordx4 {vr(p,4)}, v{AD}, s[{O}:{O+3}], s{so} offen{st}", "kvst")
            if 2 * h + ch < 2 * W - 1: A(f"s_add_u32 s{so}, s{so}, 4096")
    C["kv_top"] = AD + 4
    yield "stored"
    A.srd(K, P_WS, 16384, WS_KMB)
    A(f"v_mov_b32 v{AD+2}, s100")
    A.vmwait("kvst")
    A.vmop(f"buffer_store_dword v{AD+2}, v{AD+1}, s[{K}:{K+3}], 0 offen sc1", "fl")
    yield "done"
def poll(A, srd, soff, vtmp, vaddr, mask, cnt):
    L, Ld = A.newlabel("poll"), A.newlabel("polld")
    A(f"s_mov_b32 s{cnt}, 30000")
    A.label(L)
    A(f"buffer_load_dword v{vtmp}, v{vaddr}, s[{srd}:{srd+3}], {soff} offen sc1")
    A("s_waitcnt vmcnt(0)"); A.vm = []
    A(f"v_cmp_ne_u32 vcc, s100, v{vtmp}")
    A(f"s_and_b64 vcc, vcc, {mask}")
    A(f"s_cbranch_vccz {Ld}")
    A(f"s_sub_u32 s{cnt}, s{cnt}, 1")
    A(f"s_cbranch_scc0 {L}")
    A.label(Ld)
```

```python
from base import *
import p_conv, p_g1, p_kv
from p_kv import WS_MB, WS_KMB, poll
WREG = 40960
WA = 244
def early2(A):
    for i in range(5):
        A(f"v_add_u32 v2, {64*i}, v0")
        A("v_mul_u32_u24 v3, 6554, v2"); A("v_lshrrev_b32 v3, 16, v3")
        A("v_mul_u32_u24 v4, 10, v3"); A("v_sub_u32 v4, v2, v4")
        A("v_and_b32 v5, 19, v3"); A("v_bfe_u32 v6, v3, 2, 1"); A("v_lshl_add_u32 v5, v6, 3, v5"); A("v_bfe_u32 v6, v3, 3, 1"); A("v_lshl_add_u32 v5, v6, 2, v5")
        A("v_mul_u32_u24 v5, 1280, v5"); A(f"v_lshl_add_u32 v{WA+i}, v4, 4, v5")
def flagaddr(A, nl, sh, sreg):
    A(f"v_lshlrev_b32 v2, {sh}, v0"); A(f"v_add_u32 v2, s{sreg}, v2"); A("v_mov_b32 v3, 0x40000000")
    A(f"v_cmp_gt_u32 vcc, {nl}, v0"); A("s_nop 0"); A("v_cndmask_b32 v249, v3, v2, vcc")
def wd(i):
    L = [f"s_add_u32 s66, s57, {i*163840}"]
    for q in range(5):
        L.append(f"s_add_u32 m0, s58, {(i%8)*5120+q*1024}")
        L.append("s_nop 0")
        L.append((f"buffer_load_dwordx4 v{WA+q}, s[32:35], s66 offen lds", f"w{i}"))
    return L
def hl(C, i):
    L = [f"s_add_u32 s67, s59, {i*4096}"]
    if i == 13: L.append("s_add_u32 s67, s67, s61")
    for nt in range(4):
        L.append((f"buffer_load_dwordx4 {ar(16*i+4*nt,4)}, v{133+nt}, s[36:39], s67 offen{C['ld']}", f"h{i}"))
    return L
def trans(A, C, map2, tag):
    map2(A, C)
    A.srd(32, P_WD, 2211840); A.srd(68, P_WS, 0x14000, WS_MB)
    A("s_mul_i32 s56, s31, 160"); A("s_mul_i32 s57, s3, 40960"); A("s_add_u32 s57, s57, s56"); A(f"s_mul_i32 s58, s3, {WREG}")
    A("v_mov_b32 v250, s100")
    for i in range(C.get("nw1", 2)):
        for x in wd(i): emit(A, x)
    A.vmwait(tag)
    A.vmop("buffer_store_dword v250, v249, s[68:71], 0 offen sc1", "fl")
    C["stamp"](A, 8)
def setup2(A):
    L = []; A = L.append
    def srd(d, base, size, off=None):
        t = Asm(); t.srd(d, base, size, off); L.extend(x.strip() for x in t.L)
    srd(36, P_WS, 7077888, WS_H); srd(40, P_WS, NB, WS_YT); srd(44, P_Q, NB); srd(48, P_WS, 16384, WS_ST); srd(52, P_OUT, NB)
    A("v_lshlrev_b32 v133, 4, v0")
    for nt in range(1, 4): A(f"v_add_u32 v{133+nt}, {nt*55296}, v133")
    A("s_mul_i32 s59, s30, 221184"); A("s_lshl_b32 s60, s3, 10"); A("s_add_u32 s59, s59, s60")
    A("s_cmp_lt_u32 s3, 2"); A("s_cselect_b32 s61, 0, 0x40000000")
    A("v_lshrrev_b32 v2, 4, v0"); A("v_bfe_u32 v3, v0, 2, 2"); A("v_and_b32 v4, 3, v0")
    A("v_lshrrev_b32 v5, 1, v2"); A("v_lshl_add_u32 v5, v5, 4, v3"); A("v_and_b32 v6, 1, v2"); A("v_lshl_add_u32 v5, v6, 2, v5")
    A("v_mul_u32_u24 v5, 160, v5"); A("v_lshl_add_u32 v5, v4, 3, v5"); A("v_add_u32 v137, s58, v5")
    A("v_lshl_add_u32 v5, v2, 2, v3"); A("v_bfe_u32 v6, v5, 1, 2"); A("v_lshlrev_b32 v6, 1, v6")
    A("v_lshrrev_b32 v7, 1, v4"); A("s_lshl_b32 s60, s3, 1"); A("v_add_u32 v7, s60, v7"); A("v_xor_b32 v7, v7, v6"); A("v_lshlrev_b32 v7, 4, v7")
    A("v_and_b32 v6, 7, v5"); A("v_lshl_add_u32 v7, v6, 7, v7"); A("v_lshrrev_b32 v6, 3, v5"); A(f"v_mul_u32_u24 v6, {WREG}, v6"); A("v_add_u32 v7, v7, v6")
    A("v_and_b32 v6, 1, v4"); A("v_lshl_add_u32 v138, v6, 3, v7"); A(f"v_add_u32 v153, {2*WREG}, v138")
    A("v_and_b32 v5, 15, v0"); A("v_mul_u32_u24 v5, 336, v5"); A("v_lshl_add_u32 v5, v2, 4, v5"); A("v_add_u32 v5, 20480, v5"); A("v_add_u32 v139, s58, v5")
    A("v_add_u32 v140, s58, v133")
    A("s_mul_i32 s60, s3, 5120"); A("v_add_u32 v141, s60, v133"); A(f"v_add_u32 v142, {2*WREG}, v141")
    A("s_lshl_b32 s62, s30, 6"); A("s_lshl_b32 s60, s3, 4"); A("s_add_u32 s62, s62, s60")
    A("s_mul_i32 s63, s62, 1280"); A("s_add_u32 s63, s63, s56"); A("s_lshl_b32 s62, s62, 3")
    for rr in range(3):
        A(f"v_add_u32 v2, {64*rr}, v0")
        A("v_mul_u32_u24 v3, 6554, v2"); A("v_lshrrev_b32 v3, 16, v3"); A("v_mul_u32_u24 v4, 10, v3"); A("v_sub_u32 v4, v2, v4")
        A("v_and_b32 v5, 9, v3"); A("v_bfe_u32 v6, v3, 1, 1"); A("v_lshl_add_u32 v5, v6, 2, v5"); A("v_bfe_u32 v6, v3, 2, 1"); A("v_lshl_add_u32 v5, v6, 1, v5")
        A(f"v_lshlrev_b32 v{149+rr}, 3, v5")
        A("v_mul_u32_u24 v5, 1280, v5"); A(f"v_lshl_add_u32 v{143+rr}, v4, 4, v5")
        A("v_min_u32 v3, 15, v3"); A("v_mul_u32_u24 v3, 336, v3"); A("v_lshl_add_u32 v3, v4, 5, v3"); A("v_add_u32 v3, 20480, v3"); A(f"v_add_u32 v{146+rr}, s58, v3")
    A("v_cmp_gt_u32 vcc, 32, v0"); A("v_mov_b32 v2, 0x40000000"); A("s_nop 0"); A("v_cndmask_b32 v145, v2, v145, vcc")
    A("v_lshrrev_b32 v2, 3, v0"); A("v_bfe_u32 v3, v0, 4, 2"); A("v_lshlrev_b32 v3, 1, v3"); A("v_and_b32 v4, 7, v0"); A("v_xor_b32 v4, v4, v3")
    A("v_lshlrev_b32 v4, 4, v4"); A("v_lshl_add_u32 v152, v2, 12, v4")
    A("s_mul_i32 s64, s31, 327680"); A("s_lshl_b32 s60, s30, 7"); A("s_add_u32 s64, s64, s60"); A("s_lshl_b32 s60, s3, 15"); A("s_add_u32 s64, s64, s60")
    A("s_add_u32 s65, s58, 30720")
    A("s_lshl_b32 s72, s30, 3"); A("s_add_u32 s72, s72, s31"); A("s_lshl_b32 s72, s72, 8")
    A("v_lshlrev_b32 v154, 2, v0")
    A("s_mov_b32 s74, 0xffffff"); A("s_mov_b32 s75, 0"); A("s_mov_b32 s76, 0"); A("s_mov_b32 s77, -1")
    O = []
    for x in L:
        if x.startswith(("s_addc", "s_cselect")): O[-1] += "\n    " + x
        else: O.append(x)
    return O
def g2(A, C):
    ld = C["ld"]; ACC = 8
    WR = [("v", 88), ("v", 108), ("v", 176), ("v", 196), ("v", 216), ("a", 224)]
    wreg = lambda i, o, n: vr((WR[i] if i < 6 else WR[i & 1])[1] + o, n, (WR[i] if i < 6 else WR[i & 1])[0])
    def rd(i):
        L = []
        for mt in range(5):
            o = (i % 8) * 5120 + 32 * mt
            L.append(f"ds_read_b64_tr_b16 {wreg(i,4*mt,2)}, v137 offset:{o}")
            L.append(f"ds_read_b64_tr_b16 {wreg(i,4*mt+2,2)}, v137 offset:{o+1280}")
        return L
    n1 = C.get("nw1", 2); su = setup2(A)
    D = []
    for i in range(n1, 8):
        w = wd(i); D.append([w[0]] + w[1:4]); D += [w[4+3*q:7+3*q] for q in range(4)]
    interleave(A, D, su)
    NPW = C.get("npw", 6)
    def mvw(i):
        A.vmwait(f"w{i}")
        for x in rd(i): A(x)
        A("s_waitcnt lgkmcnt(0)")
        for x in wd(i + 8): emit(A, x)
    for i in range(NPW): mvw(i)
    C["stamp"](A, 9)
    poll(A, 68, "s72", 2, 154, "s[74:75]", 73)
    C["stamp"](A, 10)
    NH = C.get("nh", 8); hq = []
    for i in range(14):
        if i < NH:
            for x in hl(C, i): emit(A, x)
        else: hq.append(hl(C, i))
        if NPW <= i < 6: mvw(i)
    misc = []
    for q in range(3):
        misc += [f"s_add_u32 m0, s65, {q*1024}", f"s_add_u32 s66, s64, {q*131072}"]
        if q == 2: misc += ["s_add_u32 s66, s66, s61"]
        misc += [(f"buffer_load_dwordx4 v152, s[40:43], s66 offen{ld} lds", "y")]
    xs = []
    for rr in range(3):
        xs += [(f"buffer_load_dwordx4 {vr(156+4*rr,4)}, v{143+rr}, s[44:47], s63 offen", "y"),
               (f"buffer_load_dwordx2 {vr(168+2*rr,2)}, v{149+rr}, s[48:51], s62 offen{ld}", "y")]
    YP = C.get("yp", 11)
    for i in range(14):
        A.vmwait(f"h{i}")
        if i == 0: C["stamp"](A, 6)
        if i >= 6: A("s_waitcnt lgkmcnt(0)")
        F = []
        if 6 <= i + 1 < 14: F += [lambda t=f"w{i+1}": A.vmwait(t)] + rd(i + 1)
        if hq: F += hq.pop(0)
        elif xs: F += xs + [("buffer_load_dword v155, v154, s[68:71], s72 offen sc1", "yf")]; xs = []
        if i == YP:
            def chk():
                Lk = A.newlabel("yok"); A.vmwait("yf"); vm = list(A.vm)
                A("v_cmp_ne_u32 vcc, s100, v155"); A("s_and_b64 vcc, vcc, s[76:77]"); A(f"s_cbranch_vccz {Lk}")
                poll(A, 68, "s72", 155, 154, "s[76:77]", 73); A.label(Lk); A.vm = vm
            F += [chk] + misc
        M = []
        for nt in range(4):
            for mt in range(5):
                c = vr(ACC + 4 * (nt * 5 + mt), 4)
                M.append([f"v_mfma_f32_16x16x32_bf16 {c}, {wreg(i,4*mt,4)}, {ar(16*i+4*nt,4)}, {c if i else 0}"])
        rest = interleave(A, M, F, rate=max(1.0, len(F) / 19))
        for x in rest: emit(A, x)
    C["stamp"](A, 7)
    A("s_nop 7")
    for t in range(20):
        A(f"ds_write_b128 v140, {vr(ACC+4*t,4)} offset:{t*1024}")
    A.vmwait("y")
    A("s_waitcnt lgkmcnt(0)")
    A("s_barrier")
    for w in range(4):
        for mt in range(5):
            A(f"ds_read_b128 {vr(ACC+4*(w*5+mt),4)}, v{141+(w>>1)} offset:{(w&1)*WREG+mt*1024}")
    Y = 88
    for mt in range(5):
        A(f"ds_read_b64_tr_b16 {vr(Y+2*mt,2)}, v{153 if mt&1 else 138} offset:{30720+(mt>>1)*1024}")
    A("s_cmp_eq_u32 s3, 0"); A("s_cselect_b32 s72, s72, 0x40000000"); A("s_cmp_eq_u32 s3, 1"); A("s_cselect_b32 s72, s99, s72")
    A("v_mov_b32 v155, s101")
    A("buffer_store_dword v155, v154, s[68:71], s72 offen sc1")
    A("s_waitcnt lgkmcnt(15)")
    for i in range(0, 20, 2): A(f"v_pk_add_f32 {vr(ACC+i,2)}, {vr(ACC+i,2)}, {vr(ACC+20+i,2)}")
    A("s_waitcnt lgkmcnt(5)")
    for i in range(0, 20, 2): A(f"v_pk_add_f32 {vr(ACC+40+i,2)}, {vr(ACC+40+i,2)}, {vr(ACC+60+i,2)}")
    for i in range(0, 20, 2): A(f"v_pk_add_f32 {vr(ACC+i,2)}, {vr(ACC+i,2)}, {vr(ACC+40+i,2)}")
    E, YF = ACC + 20, ACC + 40
    for i in range(20): A(f"v_mul_f32 v{E+i}, 0xbfb8aa3b, v{ACC+i}")
    for i in range(20): A(f"v_exp_f32 v{E+i}, v{E+i}")
    A("s_mov_b32 s66, 0xffff0000")
    A("s_waitcnt lgkmcnt(0)")
    for i in range(10):
        A(f"v_lshlrev_b32 v{YF+2*i}, 16, v{Y+i}"); A(f"v_and_b32 v{YF+2*i+1}, s66, v{Y+i}")
    for i in range(20): A(f"v_add_f32 v{E+i}, 1.0, v{E+i}")
    for i in range(20): A(f"v_rcp_f32 v{E+i}, v{E+i}")
    for i in range(0, 20, 2): A(f"v_pk_mul_f32 {vr(ACC+i,2)}, {vr(ACC+i,2)}, {vr(YF+i,2)}")
    for i in range(0, 20, 2): A(f"v_pk_mul_f32 {vr(ACC+i,2)}, {vr(ACC+i,2)}, {vr(E+i,2)}")
    for mt in range(5): A(f"ds_write_b128 v139, {vr(ACC+4*mt,4)} offset:{64*mt}")
    A("s_waitcnt lgkmcnt(0)")
    Z, XF = 32, 60
    for rr in range(3):
        A(f"ds_read_b128 {vr(Z+8*rr,4)}, v{146+rr}"); A(f"ds_read_b128 {vr(Z+8*rr+4,4)}, v{146+rr} offset:16")
    for rr in range(3):
        xf = XF + 8 * rr; z = Z + 8 * rr
        for d in range(4):
            A(f"v_lshlrev_b32 v{xf+2*d}, 16, v{156+4*rr+d}"); A(f"v_and_b32 v{xf+2*d+1}, s66, v{156+4*rr+d}")
        for i in range(8): A(f"v_fma_f32 v{96+i}, v{xf+i}, v{168+2*rr}, v{169+2*rr}")
        A(f"s_waitcnt lgkmcnt({4-2*rr})")
        for i in range(8): A(f"v_fma_f32 v{z+i}, v{96+i}, v{z+i}, v{xf+i}")
        for d in range(4): A(f"v_cvt_pk_bf16_f32 v{156+4*rr+d}, v{z+2*d}, v{z+2*d+1}")
        A.vmop(f"buffer_store_dwordx4 {vr(156+4*rr,4)}, v{143+rr}, s[52:55], s63 offen", "o")
def build(A, C, head, tail, map1, map2, NAME):
    C.setdefault("st", " sc1"); C.setdefault("ld", "")
    K = NAME + "_kernel"
    head(A, K, 256, C); p_kv.epoch_load(A); map1(A, C, "f_conv")
    A("s_mul_i32 s84, s30, 48"); A("s_lshl_b32 s85, s31, 2"); A("s_add_u32 s84, s84, s85"); A("s_add_u32 s84, s84, s3")
    A("s_mov_b32 s99, 0x40000000")
    C["kvgen"] = p_kv.kvtask(A, C, 1, 84, 84, 64)
    def early(A):
        early2(A)
        A("s_lshr_b32 s85, s48, 1"); A("s_lshl_b32 s85, s85, 11"); A("s_lshl_b32 s86, s31, 3"); A("s_add_u32 s85, s85, s86")
        A("s_and_b32 s86, s3, 1"); A("s_lshl_b32 s86, s86, 2"); A("s_add_u32 s85, s85, s86")
        flagaddr(A, 8, 8, 85)
    C["early"] = early; C["endbar"] = 1
    p_g1.g1(A, C); trans(A, C, map2, "h"); vm = list(A.vm)
    A("s_branch f_join"); A.vm = []
    A.label("f_conv")
    A("s_lshl_b32 s52, s30, 3"); A("s_lshl_b32 s53, s3, 1"); A("s_add_u32 s52, s52, s53"); A("s_add_u32 s52, s52, 768")
    A("s_lshl_b32 s99, s30, 8"); A(f"s_add_u32 s99, s99, {WS_KMB-WS_MB}")
    kv = p_kv.kvtask(A, C, 2, 52, 8, 32); next(kv)
    p_conv.conv_early(A, C)
    next(kv)
    p_conv.conv_pads(A, C); early2(A)
    A("s_lshr_b32 s52, s30, 3"); A("s_lshl_b32 s52, s52, 8"); A("s_and_b32 s53, s30, 7"); A("s_lshl_b32 s53, s53, 4"); A("s_add_u32 s52, s52, s53")
    A("s_lshl_b32 s53, s3, 2"); A("s_add_u32 s52, s52, s53"); A("s_add_u32 s52, s52, 128")
    flagaddr(A, 32, 11, 52)
    next(kv)
    C["stamp"](A, 1)
    A("s_mul_i32 s52, s30, 10"); A("s_add_u32 s53, s52, 9"); A("s_xor_b32 s52, s52, s53"); A("s_lshr_b32 s52, s52, 4")
    A("s_cmp_lg_u32 s52, 0"); A("s_cselect_b32 s55, -1, 0"); A("s_mov_b32 s54, -1")
    A("s_lshl_b32 s52, s30, 8"); A("v_lshlrev_b32 v3, 2, v0")
    A("s_and_b32 s36, s30, 7"); A("s_lshl_b32 s36, s36, 2"); A("s_add_u32 s36, s36, s3")
    if C.get("tw", 0):
        Cn = C.get("g1c", 6); per = 12 // Cn; nl = (Cn * 288 + 127) // 128 + (per > 1)
        A("s_bitcmp1_b32 s36, 0"); A(f"s_cselect_b32 s40, s{P_WU}, s{P_WG}"); A(f"s_cselect_b32 s41, s{P_WU+1}, s{P_WG+1}")
        A("s_mov_b32 s42, 2211840"); A("s_mov_b32 s43, 0x20000")
        A("s_lshr_b32 s37, s36, 1"); A("s_mul_i32 s37, s37, 13824")
        A(f"s_and_b32 s38, s2, {per-1}"); A(f"s_mul_i32 s38, s38, {Cn*288}"); A("s_and_b32 s38, s38, 0xffffff80"); A("s_add_u32 s37, s37, s38")
        A("v_lshrrev_b32 v4, 4, v0"); A("v_mul_u32_u24 v4, 3456, v4"); A("v_and_b32 v5, 15, v0")
        for h in range((nl + 15) // 16):
            A(f"v_add_u32 v6, {16*h}, v5"); A(f"v_min_u32 v6, {nl-1}, v6"); A(f"v_lshl_add_u32 v{8+h}, v6, 7, v4")
        A(f"s_add_u32 s37, s37, {C.get('tw0', 2)*221184}")
        for i in range(C.get("tw0", 2), 10):
            for h in range((nl + 15) // 16): A.vmop(f"buffer_load_dword v251, v{8+h}, s[40:43], s37 offen", "t")
            A("s_add_u32 s37, s37, 221184")
    if C.get("td", 0):
        A.srd(44, P_WD, 2211840); A("s_mul_i32 s39, s36, 69120"); A("v_lshlrev_b32 v252, 7, v0")
        C["pre0"] = []
        for i in range(9): C["pre0"] += [("buffer_load_dword v251, v252, s[44:47], s39 offen", "t"), "s_add_u32 s39, s39, 8192"]
    poll(A, 32, "s52", 2, 3, "s[54:55]", 53)
    C["stamp"](A, 2)
    p_conv.conv_main(A, C)
    C["stamp"](A, 5)
    A("s_barrier")
    trans(A, C, map2, "yst")
    assert A.vm == vm, (A.vm, vm)
    A.label("f_join")
    g2(A, C)
    tail(A, K, C, 0, 512, 256)
    return "; @launch grid=(256,1,1) block=(256,1,1) lds=163840\n"
```

```python
import sys, json
from base import *
import p_conv, p_g1, p_g2
NAME = "recurrent_scan__ssm_conv_h3__glu_gated_glu__prompt"
def mkstamp(on):
    def stamp(A, idx, real=False):
        if not on: return
        A("s_memrealtime s[92:93]" if real else "s_memtime s[92:93]")
        A("s_waitcnt lgkmcnt(0)")
        A(f"v_writelane_b32 v255, s92, {idx}")
    return stamp
def head(A, name, nwg, C):
    A.L.append(f".text\n.globl {name}\n.p2align 8\n.type {name},@function\n{name}:")
    A("s_load_dwordx16 s[4:19], s[0:1], 0"); A("s_load_dwordx8 s[20:27], s[0:1], 64"); A("s_load_dwordx2 s[28:29], s[0:1], 96")
    A(f"s_cmp_ge_u32 s2, {nwg}"); A(f"s_cbranch_scc1 {name}_end")
    A("v_mov_b32 v1, v0"); A("v_lshrrev_b32 v2, 6, v0"); A("v_and_b32 v0, 63, v0"); A("v_readfirstlane_b32 s3, v2")
    if C["diag"]: A("v_mov_b32 v255, 0")
    C["stamp"](A, 14, True); C["stamp"](A, 0)
    A("s_waitcnt lgkmcnt(0)")
def tail(A, name, C, knum, nv, acc):
    if C["diag"]:
        A("s_waitcnt vmcnt(0)")
        C["stamp"](A, 13); C["stamp"](A, 15, True)
        A.srd(88, P_WS, 0x100000, WS_DIAG + knum * 0x40000)
        A("s_lshl_b32 s92, s2, 2"); A("s_add_u32 s92, s92, s3"); A("s_lshl_b32 s92, s92, 8"); A("v_lshlrev_b32 v2, 2, v0")
        A("buffer_store_dword v255, v2, s[88:91], s92 offen")
    if C["diag"] == 2:
        A.srd(88, P_DBG, 256)
        A("v_readlane_b32 s92, v255, 0"); A("v_readlane_b32 s93, v255, 14"); A("v_readlane_b32 s94, v255, 15"); A("s_not_b32 s93, s93")
        A("v_subrev_u32 v3, s92, v255"); A("v_mov_b32 v4, 0x40000000"); A("v_cmp_gt_u32 vcc, 14, v0"); A("s_nop 1"); A("v_cndmask_b32 v5, v4, v2, vcc")
        A(f"s_cmp_eq_u32 s2, {C.get('dwg', 100)}"); A("s_cselect_b32 s95, 0, 0x40000000"); A("s_cmp_eq_u32 s3, 0"); A("s_cselect_b32 s95, s95, 0x40000000"); A("s_cselect_b32 s96, 56, 0x40000000")
        A("buffer_store_dword v3, v5, s[88:91], s95 offen")
        A("v_mov_b32 v6, s94"); A("v_mov_b32 v7, s93"); A("v_cmp_eq_u32 vcc, 0, v0"); A("s_nop 1"); A("v_cndmask_b32 v6, v7, v6, vcc")
        A("v_cmp_gt_u32 vcc, 2, v0"); A("s_nop 1"); A("v_cndmask_b32 v5, v4, v2, vcc")
        A("buffer_atomic_umax v6, v5, s[88:91], s96 offen")
    A.label(f"{name}_end"); A("s_endpgm")
    A.L.append(f""".section .rodata,"a"
.p2align 6
.amdhsa_kernel {name}
  .amdhsa_next_free_vgpr {nv}
  .amdhsa_next_free_sgpr 102
  .amdhsa_accum_offset {acc}
  .amdhsa_group_segment_fixed_size 0
  .amdhsa_kernarg_size 104
  .amdhsa_user_sgpr_count 2
  .amdhsa_user_sgpr_kernarg_segment_ptr 1
  .amdhsa_system_sgpr_workgroup_id_x 1
.end_amdhsa_kernel""")
def map1(A, C, Lconv):
    Cn = C.get("g1c", 6); R = 24 // Cn; per = 12 // Cn
    A("s_and_b32 s94, s2, 7"); A("s_lshr_b32 s95, s2, 3")
    A("s_lshl_b32 s30, s94, 3"); A("s_add_u32 s30, s30, s95")
    A("s_cmp_lt_u32 s95, 8"); A(f"s_cbranch_scc1 {Lconv}")
    A("s_sub_u32 s95, s95, 8")
    sh = {3: 9, 6: 10, 12: 11}[Cn]; lp = {1: 0, 2: 1, 4: 2}[per]
    A("s_mul_i32 s30, s95, 171"); A(f"s_lshr_b32 s30, s30, {sh}")
    A(f"s_mul_i32 s31, s30, {Cn}"); A("s_sub_u32 s31, s95, s31")
    A(f"s_lshr_b32 s96, s94, {lp}"); A(f"s_mul_i32 s96, s96, {R}"); A("s_add_u32 s30, s30, s96")
    A(f"s_and_b32 s96, s94, {per-1}"); A(f"s_mul_i32 s96, s96, {Cn}"); A("s_add_u32 s31, s31, s96")
def map2(A, C):
    A("s_and_b32 s94, s2, 7"); A("s_lshr_b32 s95, s2, 3")
    Cn = C.get("g2c", 8); lc = {8: 3, 4: 2, 2: 1}[Cn]; lp = 3 - lc
    A(f"s_lshr_b32 s30, s95, {lc}"); A(f"s_and_b32 s31, s95, {Cn-1}")
    A(f"s_lshr_b32 s96, s94, {lp}"); A(f"s_mul_i32 s96, s96, {32//Cn}"); A("s_add_u32 s30, s30, s96")
    A(f"s_and_b32 s96, s94, {(1<<lp)-1}"); A(f"s_lshl_b32 s96, s96, {lc}"); A("s_add_u32 s31, s31, s96")
def build(C):
    C.setdefault("diag", 0); C["stamp"] = mkstamp(C["diag"])
    mode = C.get("mode", 3)
    hdr = open("cdna_kernels/" + NAME + ".s.ref").read().split("; Override launch")[0]
    out = hdr
    A = Asm()
    if mode == 3:
        C.setdefault("st", ""); C.setdefault("ld", "")
        out += "; @launch kernel=kv_kernel grid=(64,1,1) block=(256,1,1) lds=112000\n"
        out += "; @launch kernel=ph1_kernel grid=(256,1,1) block=(256,1,1) lds=163840\n"
        out += "; @launch kernel=ph2_kernel grid=(256,1,1) block=(256,1,1) lds=163840\n"
        for i in range(C.get("extra", 0)): out += "; @launch kernel=nop_kernel grid=(256,1,1) block=(256,1,1) lds=0\n"
        head(A, "kv_kernel", 64, C); A("s_mov_b32 s30, s2")
        for _ in p_conv.kvprep(A, C): pass
        tail(A, "kv_kernel", C, 0, 256, 256); A.vm = []
        head(A, "ph1_kernel", 256, C); map1(A, C, "ph1_conv")
        p_g1.g1(A, C); A("s_branch ph1_fin"); A.vm = []
        A.label("ph1_conv"); p_conv.conv_early(A, C); p_conv.conv_pads(A, C); p_conv.conv_main(A, C)
        A.label("ph1_fin"); tail(A, "ph1_kernel", C, 1, 392, 256); A.vm = []
        head(A, "ph2_kernel", 256, C); map2(A, C); p_g2.g2_early(A, C); p_g2.g2_main(A, C)
        tail(A, "ph2_kernel", C, 2, 480, 256)
        if C.get("extra", 0):
            C2 = dict(C); C2["diag"] = 0; C2["stamp"] = mkstamp(0)
            head(A, "nop_kernel", 256, C2); tail(A, "nop_kernel", C2, 3, 32, 32)
    else:
        import fused
        out += fused.build(A, C, head, tail, map1, map2, NAME)
    out += '.amdgcn_target "amdgcn-amd-amdhsa--gfx950"\n' + A.text()
    return out
if __name__ == "__main__":
    C = {}
    for a in sys.argv[2:]:
        k, v = a.split("="); C[k] = int(v) if v.lstrip("-").isdigit() else v.replace("_", " ")
    open(sys.argv[1], "w").write(build(C))
```

```python
from base import *
import p_conv, p_g1, p_kv
from p_kv import WS_MB, WS_KMB, WS_WT, poll
WREG = 40960
WA = 244
WP = 132
def wsrc(A):
    for i in range(5):
        A(f"v_add_u32 v2, {64*i}, v0")
        A("v_mul_u32_u24 v3, 6554, v2"); A("v_lshrrev_b32 v3, 16, v3")
        A("v_mul_u32_u24 v4, 10, v3"); A("v_sub_u32 v4, v2, v4")
        A("v_and_b32 v5, 19, v3"); A("v_bfe_u32 v6, v3, 2, 1"); A("v_lshl_add_u32 v5, v6, 3, v5"); A("v_bfe_u32 v6, v3, 3, 1"); A("v_lshl_add_u32 v5, v6, 2, v5")
        A("v_mul_u32_u24 v5, 1280, v5"); A(f"v_lshl_add_u32 v{236+i}, v4, 4, v5")
    A("v_lshrrev_b32 v2, 4, v0"); A("v_bfe_u32 v3, v0, 2, 2"); A("v_and_b32 v4, 3, v0")
    A("v_lshrrev_b32 v5, 1, v2"); A("v_lshl_add_u32 v5, v5, 4, v3"); A("v_and_b32 v6, 1, v2"); A("v_lshl_add_u32 v5, v6, 2, v5")
    A("v_mul_u32_u24 v5, 160, v5"); A("v_lshl_add_u32 v241, v4, 3, v5")
def early2(A, C, S, map2, O):
    A(f"v_lshlrev_b32 v{WA}, 4, v0"); A(f"v_add_u32 v{WA+1}, 4096, v{WA}"); A("v_lshlrev_b32 v254, 2, v0")
    A.srd(S, P_WS, 2211840, WS_WT); A.srd(S + 4, P_WS, 0x24000, WS_MB)
    map2(A, C, O + 1, O)
    A(f"s_lshl_b32 s{O+1}, s{O+1}, 3"); A(f"s_add_u32 s{O+1}, s{O+1}, s{O}"); A(f"s_lshl_b32 s{O+1}, s{O+1}, 9")
    A(f"s_mul_i32 s{O}, s{O}, 276480"); A("s_mul_i32 s94, s3, 5120"); A(f"s_add_u32 s{O}, s{O}, s94")
def wpre(A, C, S, O):
    rdf = [(f"buffer_load_dword v251, v254, s[{S+4}:{S+7}], s{O+1} offen offset:256 sc1", "wf")]
    def chk():
        Lk = A.newlabel("wok"); A.vmwait("wf"); vm = list(A.vm)
        A("s_mov_b32 s94, -1"); A("s_mov_b32 s95, 0")
        A("v_cmp_ne_u32 vcc, s100, v251"); A("s_and_b64 vcc, vcc, s[94:95]"); A(f"s_cbranch_vccz {Lk}")
        A(f"s_add_u32 s97, s{O+1}, 256")
        poll(A, S + 4, "s97", 251, 254, "s[94:95]", 96); A.label(Lk); A.vm = vm
    L = []
    for i in range(6):
        for q in range(5):
            x = [(f"buffer_load_dwordx4 {ar(WP+20*i+4*q,4)}, v{WA+(q>>2)}, s[{S}:{S+3}], s{O} offen offset:{(q&3)*1024}{C['ld']}", "wp")]
            if q == 4: x.append(f"s_add_u32 s{O}, s{O}, 20480")
            L.append(x)
    return rdf, chk, L
def flagaddr(A, nl, sh, sreg):
    A(f"v_lshlrev_b32 v2, {sh}, v0"); A(f"v_add_u32 v2, s{sreg}, v2"); A("v_mov_b32 v3, 0x40000000")
    A(f"v_cmp_gt_u32 vcc, {nl}, v0"); A("s_nop 0"); A("v_cndmask_b32 v249, v3, v2, vcc")
def wd(C, i):
    L = [f"s_add_u32 m0, s58, {(13-i)*5120}", "s_nop 0" if i < 13 else "s_add_u32 s57, s57, s61"]
    for q in range(5):
        if q == 4: L += [f"s_add_u32 m0, s58, {(13-i)*5120+4096}", "s_nop 0"]
        L.append((f"buffer_load_dwordx4 v{WA+(q>>2)}, s[32:35], s57 offen offset:{(q&3)*1024}{C['ld']} lds", f"w{i}"))
    return L + ["s_add_u32 s57, s57, 20480"]
def hreg(i, o, n):
    return vr(176 + 16 * (i - 8) + o, n) if 8 <= i < 12 else ar(16 * (i % 12) + o, n)
def hl(C, i):
    L = [f"s_add_u32 s67, s59, {i*4096}"]
    if i == 13: L.append("s_add_u32 s67, s67, s61")
    for nt in range(4):
        L.append((f"buffer_load_dwordx4 {hreg(i,4*nt,4)}, v{133+nt}, s[36:39], s67 offen{C['ld']}", f"h{i}"))
    return L
def trans(A, C, map2, tag, O):
    A(f"s_mov_b32 s57, s{O}"); A(f"s_mov_b32 s72, s{O+1}")
    A.srd(32, P_WS, 2211840, WS_WT); A.srd(68, P_WS, 0x24000, WS_MB)
    A(f"s_mul_i32 s58, s3, {WREG}"); A("s_cmp_lt_u32 s3, 2"); A("s_cselect_b32 s61, 0, 0x40000000")
    A("v_mov_b32 v250, s100")
    map2(A, C, 30, 31); A("s_mul_i32 s56, s31, 160")
    D = []
    for i in range(6, 6 + C.get("nw1", 2)):
        w = wd(C, i); D += [w[0:3], w[3:4], w[4:5], w[5:6], w[6:]]
    for x in interleave(A, D, setup2(A) if C.get("su", 0) else []): emit(A, x)
    A.vmwait(tag)
    A.vmop("buffer_store_dword v250, v249, s[68:71], 0 offen sc1", "fl")
    C["stamp"](A, 8)
def setup2(A):
    L = []; A = L.append
    def srd(d, base, size, off=None):
        t = Asm(); t.srd(d, base, size, off); L.extend(x.strip() for x in t.L)
    srd(36, P_WS, 7077888, WS_H); srd(40, P_WS, NB, WS_YT); srd(44, P_Q, NB); srd(48, P_WS, 16384, WS_ST); srd(52, P_OUT, NB)
    A("v_lshlrev_b32 v133, 4, v0")
    for nt in range(1, 4): A(f"v_add_u32 v{133+nt}, {nt*55296}, v133")
    A("s_mul_i32 s59, s30, 221184"); A("s_lshl_b32 s60, s3, 10"); A("s_add_u32 s59, s59, s60")
    A("v_lshrrev_b32 v2, 4, v0"); A("v_bfe_u32 v3, v0, 2, 2"); A("v_and_b32 v4, 3, v0")
    A("v_lshl_add_u32 v5, v2, 2, v3"); A("v_bfe_u32 v6, v5, 1, 2"); A("v_lshlrev_b32 v6, 1, v6")
    A("v_lshrrev_b32 v7, 1, v4"); A("s_lshl_b32 s60, s3, 1"); A("v_add_u32 v7, s60, v7"); A("v_xor_b32 v7, v7, v6"); A("v_lshlrev_b32 v7, 4, v7")
    A("v_and_b32 v6, 7, v5"); A("v_lshl_add_u32 v7, v6, 7, v7"); A("v_lshrrev_b32 v6, 3, v5"); A(f"v_mul_u32_u24 v6, {WREG}, v6"); A("v_add_u32 v7, v7, v6")
    A("v_and_b32 v6, 1, v4"); A("v_lshl_add_u32 v138, v6, 3, v7"); A(f"v_add_u32 v153, {2*WREG}, v138")
    A("v_and_b32 v5, 15, v0"); A("v_mul_u32_u24 v5, 336, v5"); A("v_lshl_add_u32 v5, v2, 4, v5"); A("v_add_u32 v5, 20480, v5"); A("v_add_u32 v139, s58, v5")
    A("v_add_u32 v140, s58, v133")
    A("s_mul_i32 s60, s3, 5120"); A("v_add_u32 v141, s60, v133"); A(f"v_add_u32 v142, {2*WREG}, v141")
    A("s_lshl_b32 s62, s30, 6"); A("s_lshl_b32 s60, s3, 4"); A("s_add_u32 s62, s62, s60")
    A("s_mul_i32 s63, s62, 1280"); A("s_add_u32 s63, s63, s56"); A("s_lshl_b32 s62, s62, 3")
    for rr in range(3):
        A(f"v_add_u32 v2, {64*rr}, v0")
        A("v_mul_u32_u24 v3, 6554, v2"); A("v_lshrrev_b32 v3, 16, v3"); A("v_mul_u32_u24 v4, 10, v3"); A("v_sub_u32 v4, v2, v4")
        A("v_and_b32 v5, 9, v3"); A("v_bfe_u32 v6, v3, 1, 1"); A("v_lshl_add_u32 v5, v6, 2, v5"); A("v_bfe_u32 v6, v3, 2, 1"); A("v_lshl_add_u32 v5, v6, 1, v5")
        A(f"v_lshlrev_b32 v{149+rr}, 3, v5")
        A("v_mul_u32_u24 v5, 1280, v5"); A(f"v_lshl_add_u32 v{143+rr}, v4, 4, v5")
        A("v_min_u32 v3, 15, v3"); A("v_mul_u32_u24 v3, 336, v3"); A("v_lshl_add_u32 v3, v4, 5, v3"); A("v_add_u32 v3, 20480, v3"); A(f"v_add_u32 v{146+rr}, s58, v3")
    A("v_cmp_gt_u32 vcc, 32, v0"); A("v_mov_b32 v2, 0x40000000"); A("s_nop 0"); A("v_cndmask_b32 v145, v2, v145, vcc")
    A("v_lshrrev_b32 v2, 3, v0"); A("v_bfe_u32 v3, v0, 4, 2"); A("v_lshlrev_b32 v3, 1, v3"); A("v_and_b32 v4, 7, v0"); A("v_xor_b32 v4, v4, v3")
    A("v_lshlrev_b32 v4, 4, v4"); A("v_lshl_add_u32 v152, v2, 12, v4")
    A("s_mul_i32 s64, s31, 327680"); A("s_lshl_b32 s60, s30, 7"); A("s_add_u32 s64, s64, s60"); A("s_lshl_b32 s60, s3, 15"); A("s_add_u32 s64, s64, s60")
    A("s_add_u32 s65, s58, 30720")
    A("v_lshlrev_b32 v154, 2, v0"); A("v_min_u32 v174, 92, v154"); A("v_max_u32 v175, 128, v154")
    A("s_mov_b32 s74, 0xffffff"); A("s_mov_b32 s75, 0"); A("s_mov_b32 s76, 0"); A("s_mov_b32 s77, -1")
    O = []
    for x in L:
        if x.startswith(("s_addc", "s_cselect")): O[-1] += "\n    " + x
        else: O.append(x)
    return O
def g2(A, C):
    ld = C["ld"]; ACC = 8; HA, YA = (174, 175) if C.get("cl", 1) else (154, 154)
    wreg = lambda i, o, n: ar(WP + 20 * i + o, n) if i < 6 else vr(88 + 20 * (i & 1) + o, n)
    def rd(i):
        return [f"ds_read_b128 {wreg(i,4*mt,4)}, v140 offset:{(13-i)*5120+1024*mt}" for mt in range(5)]
    n1 = C.get("nw1", 2); NPW = C.get("npw", 8)
    D = []
    for i in range(6 + n1, 6 + NPW):
        w = wd(C, i); D += [w[0:3], w[3:4], w[4:5], w[5:6], w[6:]]
    for x in interleave(A, D, [] if C.get("su", 0) else setup2(A)): emit(A, x)
    C["stamp"](A, 9)
    if C.get("p1", 0):
        vm = list(A.vm); A("s_cmp_lg_u32 s3, 3"); A("s_cbranch_scc1 f_hok")
        poll(A, 68, "s72", 2, HA, "s[74:75]", 73); A.label("f_hok"); A("s_barrier"); A.vm = vm
    else: poll(A, 68, "s72", 2, HA, "s[74:75]", 73)
    C["stamp"](A, 10)
    NH = C.get("nh", 8); hq = []
    for i in range(14):
        if i < NH:
            for x in hl(C, i): emit(A, x)
        else: hq.append(hl(C, i))
    wq = [wd(C, i) for i in range(6 + NPW, 14)]
    misc = []
    for q in range(3):
        misc += [f"s_add_u32 m0, s65, {q*1024}", f"s_add_u32 s66, s64, {q*131072}"]
        if q == 2: misc += ["s_add_u32 s66, s66, s61"]
        misc += [(f"buffer_load_dwordx4 v152, s[40:43], s66 offen{ld} lds", "y")]
    xs = []
    for rr in range(3):
        xs += [(f"buffer_load_dwordx4 {vr(156+4*rr,4)}, v{143+rr}, s[44:47], s63 offen", "y"),
               (f"buffer_load_dwordx2 {vr(168+2*rr,2)}, v{149+rr}, s[48:51], s62 offen{ld}", "y")]
    YP = C.get("yp", 11)
    for i in range(14):
        A.vmwait(f"h{i}")
        if i == 0: C["stamp"](A, 6)
        if i >= 6: A("s_waitcnt lgkmcnt(0)")
        F = []
        if 6 <= i + 1 < 14: F += [lambda t=f"w{i+1}": A.vmwait(t)] + rd(i + 1)
        if wq: F += wq.pop(0)
        if i == 13: A("s_cmp_ge_u32 s3, 2"); A("s_cbranch_scc1 f_no13")
        if hq: assert 14 - len(hq) < 12 or i > 14 - len(hq) - 12; F += hq.pop(0)
        elif xs: F += xs + [(f"buffer_load_dword v155, v{YA}, s[68:71], s72 offen sc1", "yf")]; xs = []
        if i == YP:
            def chk():
                Lk = A.newlabel("yok"); A.vmwait("yf"); vm = list(A.vm)
                A("v_cmp_ne_u32 vcc, s100, v155"); A("s_and_b64 vcc, vcc, s[76:77]"); A(f"s_cbranch_vccz {Lk}")
                poll(A, 68, "s72", 155, YA, "s[76:77]", 73); A.label(Lk); A.vm = vm
            F += [chk] + misc
        M = []
        for nt in range(4):
            for mt in range(5):
                c = vr(ACC + 4 * (nt * 5 + mt), 4)
                M.append([f"v_mfma_f32_16x16x32_bf16 {c}, {wreg(i,4*mt,4)}, {hreg(i,4*nt,4)}, {c if i else 0}"])
        rate = max(1.0, len(F) / 19)
        if rate > 1:
            F = [(lambda y=x: (A("s_nop 0"), emit(A, y))) if isinstance(x, tuple) and x[0].endswith(" lds") else x for x in F]
        rest = interleave(A, M, F, rate=rate)
        for x in rest: emit(A, x)
    A.label("f_no13")
    C["stamp"](A, 7)
    A("s_nop 7")
    for t in range(20):
        A(f"ds_write_b128 v140, {vr(ACC+4*t,4)} offset:{t*1024}")
    A.vmwait("y")
    A("s_waitcnt lgkmcnt(0)")
    A("s_barrier")
    for w in range(4):
        for mt in range(5):
            A(f"ds_read_b128 {vr(ACC+4*(w*5+mt),4)}, v{141+(w>>1)} offset:{(w&1)*WREG+mt*1024}")
    Y = 88
    for mt in range(5):
        A(f"ds_read_b64_tr_b16 {vr(Y+2*mt,2)}, v{153 if mt&1 else 138} offset:{30720+(mt>>1)*1024}")
    A("s_lshl_b32 s73, s3, 7"); A("s_add_u32 s72, s72, s73"); A("s_cmp_eq_u32 s3, 1"); A("s_cselect_b32 s72, s99, s72")
    A("s_cmp_eq_u32 s3, 3"); A("s_cselect_b32 s72, 0x40000000, s72")
    A("v_mov_b32 v155, s101")
    A("buffer_store_dword v155, v154, s[68:71], s72 offen sc1")
    A("s_waitcnt lgkmcnt(15)")
    for i in range(0, 20, 2): A(f"v_pk_add_f32 {vr(ACC+i,2)}, {vr(ACC+i,2)}, {vr(ACC+20+i,2)}")
    A("s_waitcnt lgkmcnt(5)")
    for i in range(0, 20, 2): A(f"v_pk_add_f32 {vr(ACC+40+i,2)}, {vr(ACC+40+i,2)}, {vr(ACC+60+i,2)}")
    for i in range(0, 20, 2): A(f"v_pk_add_f32 {vr(ACC+i,2)}, {vr(ACC+i,2)}, {vr(ACC+40+i,2)}")
    E, YF = ACC + 20, ACC + 40
    for i in range(20): A(f"v_mul_f32 v{E+i}, 0xbfb8aa3b, v{ACC+i}")
    for i in range(20): A(f"v_exp_f32 v{E+i}, v{E+i}")
    A("s_mov_b32 s66, 0xffff0000")
    A("s_waitcnt lgkmcnt(0)")
    for i in range(10):
        A(f"v_lshlrev_b32 v{YF+2*i}, 16, v{Y+i}"); A(f"v_and_b32 v{YF+2*i+1}, s66, v{Y+i}")
    for i in range(20): A(f"v_add_f32 v{E+i}, 1.0, v{E+i}")
    for i in range(20): A(f"v_rcp_f32 v{E+i}, v{E+i}")
    for i in range(0, 20, 2): A(f"v_pk_mul_f32 {vr(ACC+i,2)}, {vr(ACC+i,2)}, {vr(YF+i,2)}")
    for i in range(0, 20, 2): A(f"v_pk_mul_f32 {vr(ACC+i,2)}, {vr(ACC+i,2)}, {vr(E+i,2)}")
    for mt in range(5): A(f"ds_write_b128 v139, {vr(ACC+4*mt,4)} offset:{64*mt}")
    A("s_waitcnt lgkmcnt(0)")
    Z, XF = 32, 60
    for rr in range(3):
        A(f"ds_read_b128 {vr(Z+8*rr,4)}, v{146+rr}"); A(f"ds_read_b128 {vr(Z+8*rr+4,4)}, v{146+rr} offset:16")
    for rr in range(3):
        xf = XF + 8 * rr; z = Z + 8 * rr
        for d in range(4):
            A(f"v_lshlrev_b32 v{xf+2*d}, 16, v{156+4*rr+d}"); A(f"v_and_b32 v{xf+2*d+1}, s66, v{156+4*rr+d}")
        for i in range(8): A(f"v_fma_f32 v{96+i}, v{xf+i}, v{168+2*rr}, v{169+2*rr}")
        A(f"s_waitcnt lgkmcnt({4-2*rr})")
        for i in range(8): A(f"v_fma_f32 v{z+i}, v{96+i}, v{z+i}, v{xf+i}")
        for d in range(4): A(f"v_cvt_pk_bf16_f32 v{156+4*rr+d}, v{z+2*d}, v{z+2*d+1}")
        A.vmop(f"buffer_store_dwordx4 {vr(156+4*rr,4)}, v{143+rr}, s[52:55], s63 offen", "o")
def gtouch(A, S):
    A(f"s_lshl_b32 s{S+4}, s2, 2"); A(f"s_add_u32 s{S+4}, s{S+4}, s3")
    A(f"s_mov_b32 s{S}, s{P_WG}"); A(f"s_mov_b32 s{S+1}, s{P_WG+1}"); A(f"s_mov_b32 s{S+5}, s{S+4}")
    for n, P in ((270, P_WU), (540, P_WD)):
        A(f"s_sub_u32 s{S+6}, s{S+4}, {n}"); A(f"s_cmp_ge_u32 s{S+4}, {n}")
        A(f"s_cselect_b32 s{S}, s{P}, s{S}"); A(f"s_cselect_b32 s{S+1}, s{P+1}, s{S+1}"); A(f"s_cselect_b32 s{S+5}, s{S+6}, s{S+5}")
    A(f"s_mov_b32 s{S+2}, 2211840"); A(f"s_mov_b32 s{S+3}, 0x20000"); A(f"s_lshl_b32 s{S+5}, s{S+5}, 13")
    A("v_lshlrev_b32 v252, 7, v0")
    A.vmop(f"buffer_load_dword v251, v252, s[{S}:{S+3}], s{S+5} offen", "t")
def ltouch(A, C):
    S = 32; Cn = C.get("g1c", 6); R = 24 // Cn; lp = {12: 0, 6: 1, 3: 2}[Cn]
    A("s_and_b32 s94, s2, 7"); A("s_lshr_b32 s95, s2, 3"); A("s_lshl_b32 s95, s95, 2"); A("s_add_u32 s95, s95, s3")
    A("v_min_u32 v252, 39, v0"); A("v_lshlrev_b32 v252, 7, v252")
    if C["lt"] & 1:
        A("s_bitcmp1_b32 s3, 0"); A(f"s_cselect_b32 s{S}, s{P_V}, s{P_K}"); A(f"s_cselect_b32 s{S+1}, s{P_V+1}, s{P_K+1}")
        A(f"s_mov_b32 s{S+2}, {NB}"); A(f"s_mov_b32 s{S+3}, 0x20000")
        A("s_mul_i32 s96, s94, 327680"); A("s_lshr_b32 s97, s95, 1"); A("s_mul_i32 s97, s97, 5120"); A("s_add_u32 s96, s96, s97")
        A(f"buffer_load_dword v251, v252, s[{S}:{S+3}], s96 offen")
    if C["lt"] & 2:
        A.srd(S + 4, P_Q, NB)
        A(f"s_lshr_b32 s96, s94, {lp}"); A(f"s_mul_i32 s96, s96, {R*163840}"); A(f"s_mul_i32 s97, s95, {R*1280}"); A("s_add_u32 s96, s96, s97")
        for i in range(max(1, R // 4)):
            A(f"buffer_load_dword v251, v252, s[{S+4}:{S+7}], s96 offen")
            if i + 1 < R // 4: A("s_add_u32 s96, s96, 5120")
    if C["lt"] & 4:
        A.srd(S + 8, P_SK, NB); A("v_min_u32 v252, 19, v0"); A("v_lshlrev_b32 v252, 7, v252")
        A("s_mul_i32 s96, s94, 327680"); A("s_mul_i32 s97, s95, 2560"); A("s_add_u32 s96, s96, s97")
        A(f"buffer_load_dword v251, v252, s[{S+8}:{S+11}], s96 offen")
    if C["lt"] & 8:
        gtouch(A, S + 12); A.vm = []
def td2_setup(A, S):
    A.srd(S, P_WD, 2211840); A(f"s_lshr_b32 s{S+4}, s2, 3"); A(f"s_lshl_b32 s{S+4}, s{S+4}, 2"); A(f"s_add_u32 s{S+4}, s{S+4}, s3"); A(f"s_mul_i32 s{S+4}, s{S+4}, 17280")
    A("v_min_u32 v253, 44, v0"); A("v_lshlrev_b32 v253, 7, v253")
    L = []
    for i in range(3): L.append([(f"buffer_load_dword v251, v253, s[{S}:{S+3}], s{S+4} offen", "t"), f"s_add_u32 s{S+4}, s{S+4}, 5760"])
    return L
def codepf(A, K):
    A("s_getpc_b64 s[88:89]"); A.label("f_pc")
    A(f"s_mov_b32 s90, {K}_end-f_pc"); A("s_mov_b32 s91, 0x20000")
    A("s_lshr_b32 s92, s2, 3"); A("s_lshl_b32 s92, s92, 2"); A("s_add_u32 s92, s92, s3"); A("s_lshl_b32 s92, s92, 9")
    A("v_min_u32 v252, 3, v0"); A("v_lshlrev_b32 v252, 7, v252")
    A("buffer_load_dword v251, v252, s[88:91], s92 offen")
def build(A, C, head, tail, map1, map2, NAME):
    C.setdefault("st", " sc1"); C.setdefault("ld", "")
    K = NAME + "_kernel"
    if C.get("pf", 0): C["pre"] = lambda A: codepf(A, K)
    head(A, K, 256, C); p_kv.epoch_load(A)
    if C.get("lt", 0): ltouch(A, C)
    map1(A, C, "f_conv")
    A("s_mul_i32 s98, s30, 48"); A("s_lshl_b32 s97, s31, 2"); A("s_add_u32 s98, s98, s97"); A("s_add_u32 s98, s98, s3")
    A("s_mov_b32 s99, 0x40000000")
    KA = C.get("kvall", 1)
    if not KA: C["kvgen"] = p_kv.kvtask(A, C, 1, 98, 84, 64)
    def early(A):
        early2(A, C, 84, map2, 62)
        rdf, chk, L = wpre(A, C, 84, 62)
        C["g1fill"] = {C.get("wfm", 205): rdf, 252: [chk]}
        for n, x in enumerate(L): C["g1fill"][253 + n * C.get("wsp", 3)] = x
        if KA: A("s_waitcnt lgkmcnt(0)"); p_kv.epoch_fin(A)
        A("s_lshr_b32 s95, s48, 1"); A("s_lshl_b32 s95, s95, 12"); A("s_lshl_b32 s96, s31, 3"); A("s_add_u32 s95, s95, s96")
        A("s_and_b32 s96, s3, 1"); A("s_lshl_b32 s96, s96, 2"); A("s_add_u32 s95, s95, s96")
        flagaddr(A, 8, 9, 95)
    C["early"] = early; C["endbar"] = 1
    if C.get("gt", 0): C["afterkv"] = lambda A: gtouch(A, 72)
    p_g1.g1(A, C); trans(A, C, map2, "h", 62); vm = list(A.vm)
    A("s_branch f_join"); A.vm = []
    A.label("f_conv")
    A("s_lshl_b32 s52, s30, 3"); A("s_lshl_b32 s53, s3, 1"); A("s_add_u32 s52, s52, s53"); A("s_add_u32 s52, s52, 768")
    A("s_lshl_b32 s99, s30, 8"); A(f"s_add_u32 s99, s99, {WS_KMB-WS_MB}")
    if KA:
        A("s_mul_i32 s52, s30, 20"); A("s_add_u32 s94, s52, 16"); A("s_add_u32 s94, s94, s3"); A("s_lshl_b32 s53, s3, 2"); A("s_add_u32 s52, s52, s53")
        kv = p_kv.kvtask(A, C, 4, 52, 8, 32, 124, 186); next(kv)
        kv2 = p_kv.kvtask(A, C, 1, 94, 100, 32, 124, 190, False, "b"); next(kv2)
    else:
        kv = p_kv.kvtask(A, C, 2, 52, 8, 32); next(kv)
    p_conv.conv_early(A, C)
    C["stamp"](A, 11)
    next(kv)
    if KA: next(kv2)
    if C.get("klate") == 1:
        for n in range(2):
            for x in p_conv.kdma(A, n, n): emit(A, x)
    p_conv.conv_pads(A, C); wsrc(A)
    A("s_lshr_b32 s52, s30, 3"); A("s_lshl_b32 s52, s52, 9"); A("s_and_b32 s53, s30, 7"); A("s_lshl_b32 s53, s53, 4"); A("s_add_u32 s52, s52, s53")
    A("s_lshl_b32 s53, s3, 2"); A("s_add_u32 s52, s52, s53"); A("s_add_u32 s52, s52, 128")
    flagaddr(A, 32, 12, 52)
    next(kv)
    if KA: next(kv2)
    if C.get("klate") == 2:
        for n in range(2):
            for x in p_conv.kdma(A, n, n): emit(A, x)
    if C.get("gt", 0): gtouch(A, 40)
    C["stamp"](A, 1)
    A("s_mul_i32 s52, s30, 10"); A("s_add_u32 s53, s52, 9"); A("s_xor_b32 s52, s52, s53"); A("s_lshr_b32 s52, s52, 4")
    A("s_cmp_lg_u32 s52, 0"); A("s_cselect_b32 s55, -1, 0"); A("s_mov_b32 s54, -1")
    A("s_lshl_b32 s52, s30, 8"); A("v_lshlrev_b32 v3, 2, v0")
    A.srd(48, P_WD, 2211840)
    A("s_and_b32 s46, s30, 7"); A("s_lshl_b32 s46, s46, 2"); A("s_add_u32 s46, s46, s3")
    A("s_lshr_b32 s47, s30, 3"); A("s_mul_i32 s94, s47, 160"); A("s_mul_i32 s95, s46, 40960"); A("s_add_u32 s94, s94, s95")
    A(f"s_add_u32 s96, s76, {p_conv.UBUF}"); A("s_mul_i32 s97, s3, 5120"); A("s_add_u32 s97, s97, 141312")
    A("v_add_u32 v242, s96, v241"); A("v_add_u32 v243, s97, v241")
    A("s_mov_b32 s84, s94"); A("s_mov_b32 s85, s96"); A("s_mov_b32 s86, s97")
    A("s_mul_i32 s47, s47, 54"); A("s_add_u32 s47, s47, s46"); A("s_mul_i32 s47, s47, 5120")
    A("s_cmp_lt_u32 s46, 22"); A("s_cselect_b32 s46, 163840, 0x40000000"); A("s_add_u32 s46, s46, s47")
    early2(A, C, 36, map2, 44)
    def retile():
        for n in range(2):
            for q in range(5):
                A(f"s_add_u32 m0, s{85+n}, {q*1024}"); A("s_nop 0")
                A.vmop(f"buffer_load_dwordx4 v{236+q}, s[48:51], s84 offen lds", "ws")
            A("s_add_u32 s84, s84, 1310720")
    C["retile"] = retile
    trd = [f"ds_read_b64_tr_b16 {ar(20*n+4*mt+2*u,2)}, v{242+n} offset:{32*mt+1280*u}" for n in range(2) for mt in range(5) for u in range(2)]
    wst = [(f"buffer_store_dwordx4 {ar(20*n+4*mt,4)}, v{WA+(mt>>2)}, s[36:39], s{47-n} offen offset:{(mt&3)*1024}{C['st']}", "wst") for n in range(2) for mt in range(5)]
    rdf, chk, L = wpre(A, C, 36, 44)
    R = C.get("rtr", 2)
    C["cfill"] = {(0, R): [lambda: A.vmwait("ws")] + trd, (0, R + 1): wst + p_conv.udma(A, C, 1, 1) + p_conv.upads(1),
                  (0, R + 3): ["v_mov_b32 v250, s100", lambda: A.vmwait("wst"), ("buffer_store_dword v250, v249, s[40:43], 0 offen offset:128 sc1", "fl")],
                  (1, 0): rdf, (1, 2): [chk] + sum(L[:5], [])}
    for r in range(3, 7): C["cfill"][(1, r)] = sum(L[5*r-10:5*r-5], [])
    C["cfill"][(1, 6)] += sum(L[25:], [])
    if C.get("p2", 0):
        vk = list(A.vm); A("s_cmp_lg_u32 s3, 3"); A("s_cbranch_scc1 f_kok")
        poll(A, 32, "s52", 2, 3, "s[54:55]", 53); A.label("f_kok"); A("s_barrier"); A.vm = vk
    else: poll(A, 32, "s52", 2, 3, "s[54:55]", 53)
    C["stamp"](A, 2)
    p_conv.conv_main(A, C)
    C["stamp"](A, 5)
    A("s_barrier")
    trans(A, C, map2, "yst", 44)
    assert A.vm == vm, (A.vm, vm)
    A.label("f_join")
    g2(A, C)
    tail(A, K, C, 0, 512, 256)
    return "; @launch grid=(256,1,1) block=(256,1,1) lds=163840\n"
```

```python
from base import *
KBUF, UBUF = 8448, 9216
KE, KO = 0, 4224
U1, U0 = 0, 4576
UBASE = 8 * KBUF
PREP = UBASE
def kvprep(A, C):
    st = C["st"]
    A.srd(32, P_K, NB); A.srd(36, P_V, NB); A.srd(40, P_SH, 5120); A.srd(44, P_WS, NB)
    A("s_lshr_b32 s48, s30, 1")
    A("s_and_b32 s49, s30, 1")
    A("s_mul_i32 s50, s48, 81920")
    A("s_mul_i32 s51, s49, 640")
    A("s_add_u32 s50, s50, s51")
    A("s_mul_i32 s51, s49, 2560")
    A("s_movk_i32 s52, 5120")
    D = 16
    for it in range(5):
        b = D + it * 24
        A(f"v_add_u32 v2, {it*256}, v1")
        A("v_mul_u32_u24 v3, 52429, v2")
        A("v_lshrrev_b32 v3, 23, v3")
        A("v_mul_u32_u24 v4, 160, v3")
        A("v_sub_u32 v4, v2, v4")
        A("v_mul_u32_u24 v5, 10240, v3")
        A("v_lshl_add_u32 v5, v4, 2, v5")
        A("v_add_u32 v5, s50, v5")
        A("v_subrev_u32 v6, 3840, v5")
        A("v_lshlrev_b32 v7, 4, v4")
        A.vmop(f"buffer_load_dwordx4 {vr(b+20,4)}, v7, s[40:43], s51 offen", f"t{it}")
        for i in range(3):
            A.vmop(f"buffer_load_dword v{b+i}, v6, s[32:35], 0 offen offset:{i*1280}", f"t{it}")
        for i in range(8):
            so = "0" if i < 4 else "s52"
            A.vmop(f"buffer_load_dword v{b+3+i}, v5, s[32:35], {so} offen offset:{(i%4)*1280}", f"t{it}")
            A.vmop(f"buffer_load_dword v{b+11+i}, v5, s[36:39], {so} offen offset:{(i%4)*1280}", f"t{it}")
        A("v_mul_u32_u24 v7, 272, v4")
        A("v_sub_u32 v3, 7, v3")
        A(f"v_lshl_add_u32 v{8+it}, v3, 4, v7")
        if it == 2: yield "mid"
    yield "issued"
    T = 136
    Kp, Wp, Vp, O, PK = T, T + 22, T + 30, T + 32, T + 48
    A("s_mov_b32 s53, 0xffff0000")
    for it in range(5):
        b = D + it * 24
        A.vmwait(f"t{it}")
        for j in range(4):
            for ch in range(2):
                src = b + 20 + ch * 2 + (j >> 1)
                A(f"v_and_b32 v{Wp+2*j+ch}, s53, v{src}" if j & 1 else f"v_lshlrev_b32 v{Wp+2*j+ch}, 16, v{src}")
        for i in range(11):
            A(f"v_lshlrev_b32 v{Kp+2*i}, 16, v{b+i}")
            A(f"v_and_b32 v{Kp+2*i+1}, s53, v{b+i}")
        for r in range(8):
            A(f"v_pk_mul_f32 {vr(O+2*r,2)}, {vr(Wp+6,2)}, {vr(Kp+2*r,2)}")
        for j in (2, 1, 0):
            for r in range(8):
                A(f"v_pk_fma_f32 {vr(O+2*r,2)}, {vr(Wp+2*j,2)}, {vr(Kp+2*(r+3-j),2)}, {vr(O+2*r,2)}")
        for r in range(8):
            A(f"v_lshlrev_b32 v{Kp+2*r}, 16, v{b+11+r}")
            A(f"v_and_b32 v{Kp+2*r+1}, s53, v{b+11+r}")
        for r in range(8):
            A(f"v_pk_mul_f32 {vr(O+2*r,2)}, {vr(O+2*r,2)}, {vr(Kp+2*r,2)}")
        pk = PK + (it & 1) * 8
        for ch in range(2):
            for q in range(4):
                A(f"v_cvt_pk_bf16_f32 v{pk+4*ch+q}, v{O+2*(7-2*q)+ch}, v{O+2*(6-2*q)+ch}")
        A(f"ds_write_b128 v{8+it}, {vr(pk,4)} offset:{PREP-65536+0}" if False else f"v_add_u32 v7, {PREP}, v{8+it}")
        A(f"ds_write_b128 v7, {vr(pk,4)}")
        A(f"ds_write_b128 v7, {vr(pk+4,4)} offset:128")
    A("v_lshrrev_b32 v2, 4, v1")
    A("v_mul_u32_u24 v2, 272, v2")
    A("v_and_b32 v3, 15, v1")
    A("v_lshl_add_u32 v2, v3, 4, v2")
    A(f"v_add_u32 v2, {PREP}, v2")
    A("v_lshrrev_b32 v4, 3, v1")
    A("v_lshlrev_b32 v4, 12, v4")
    A("v_and_b32 v3, 7, v1")
    A("v_lshl_add_u32 v4, v3, 4, v4")
    A("s_sub_u32 s50, 31, s48")
    A("s_lshl_b32 s50, s50, 7")
    A("s_mul_i32 s51, s49, 1310720")
    A("s_add_u32 s50, s50, s51")
    A("s_waitcnt lgkmcnt(0)")
    A("s_barrier")
    for i in range(10):
        A(f"ds_read_b128 {vr(D+4*i,4)}, v2 offset:{i*16*272}")
    for i in range(10):
        A(f"s_waitcnt lgkmcnt({9-i})")
        A.vmop(f"buffer_store_dwordx4 {vr(D+4*i,4)}, v4, s[44:47], s50 offen{st}", "kvst")
        if i < 9: A("s_add_u32 s50, s50, 131072")
    yield "done"

def conv_early(A, C):
    A.srd(56, P_SK, NB)
    A("s_mul_i32 s60, s30, 10")
    A("s_lshl_b32 s61, s3, 1")
    A("s_add_u32 s61, s60, s61")
    A("s_lshr_b32 s62, s3, 1")
    A("s_add_u32 s62, s62, s60")
    A("s_add_u32 s62, s62, 8")
    A("s_lshl_b32 s63, s61, 12")
    A("s_add_u32 s64, s63, 4096")
    A("s_lshl_b32 s65, s62, 12")
    for n in range(3):
        A(f"s_load_dwordx2 s[{66+2*n}:{67+2*n}], s[{P_SK}:{P_SK+1}], s{63+n}")
    A("s_lshl_b32 s72, s61, 1")
    A(f"s_load_dword s73, s[{P_SD}:{P_SD+1}], s72")
    A("s_lshl_b32 s72, s62, 1")
    A("s_and_b32 s72, s72, 0xfffffffc")
    A(f"s_load_dword s74, s[{P_SD}:{P_SD+1}], s72")
    A(f"s_mul_i32 s75, s3, {2*KBUF}")
    A(f"s_mul_i32 s76, s3, {2*UBUF}")
    A(f"s_add_u32 s76, s76, {UBASE}")
    A("v_lshlrev_b32 v200, 4, v0")
    for n in range(0 if C.get("klate") else 2):
        for x in kdma(A, n, n): emit(A, x)

def kdma(A, n, buf):
    L = []
    L.append(f"s_add_u32 m0, s75, {buf*KBUF+KE+64}")
    L.append(f"s_add_u32 s77, s{63+n}, 6")
    for i in range(4):
        L.append((f"buffer_load_dwordx4 v200, s[56:59], s{63+n} offen offset:{i*1024} lds", f"k{n}"))
    L.append(f"s_add_u32 m0, s75, {buf*KBUF+KO+64}")
    L.append("s_nop 0")
    for i in range(4):
        L.append((f"buffer_load_dwordx4 v200, s[56:59], s77 offen offset:{i*1024} lds", f"k{n}"))
    return L
def kpatch(n, buf):
    return [f"s_lshl_b32 s78, s{66+2*n}, 16", f"s_lshr_b32 s79, s{66+2*n}, 16", f"s_lshl_b32 s72, s{67+2*n}, 16",
            "s_or_b32 s79, s79, s72", "v_mov_b32 v204, s78", "v_mov_b32 v205, s79", "v_mov_b32 v206, s75",
            f"ds_write_b64 v206, v[204:205] offset:{buf*KBUF+KO+56}"]
def udma(A, C, n, buf):
    ld = C["ld"]
    L = [f"s_add_u32 s80, s{P_WS}, s{63+n}", f"s_addc_u32 s81, s{P_WS+1}, 0", "s_movk_i32 s82, 4096", "s_mov_b32 s83, 0x20000",
         f"s_add_u32 m0, s76, {buf*UBUF+U1}", "s_nop 0"]
    for i in range(4):
        L.append((f"buffer_load_dwordx4 v200, s[80:83], 0 offen offset:{i*1024} {ld} lds", f"u{n}"))
    L += [f"s_add_u32 m0, s76, {buf*UBUF+U0}", "s_nop 0"]
    for i in range(4):
        L.append((f"buffer_load_dwordx4 v200, s[80:83], 4 offen offset:{i*1024} {ld} lds", f"u{n}"))
    return L

def conv_pads(A, C):
    A("s_waitcnt lgkmcnt(0)")
    for r in range(4): A(f"v_mov_b32 v{208+r}, 0")
    A("v_and_b32 v201, 3, v0")
    A("v_lshlrev_b32 v201, 4, v201")
    A("v_add_u32 v201, s75, v201")
    for buf in range(2):
        A(f"ds_write_b128 v201, v[208:211] offset:{buf*KBUF+KE}")
        A(f"ds_write_b128 v201, v[208:211] offset:{buf*KBUF+KO}")
    for n in range(2):
        for x in kpatch(n, n): A(x)

def upads(buf):
    return [f"ds_write_b128 v201, v[208:211] offset:{buf*UBUF+U1+4096}", f"ds_write_b128 v201, v[208:211] offset:{buf*UBUF+U0+4096}"]
def conv_main(A, C):
    st = C["st"]
    for x in udma(A, C, 0, 0): emit(A, x)
    if C.get("retile"): C["retile"]()
    else:
        for x in udma(A, C, 1, 1): emit(A, x)
    A("v_min_u32 v201, 27, v0")
    A("v_lshlrev_b32 v201, 4, v201")
    A("v_add_u32 v201, s76, v201")
    for buf in range(1 if C.get("retile") else 2):
        for x in upads(buf): A(x)
    A("v_and_b32 v2, 1, v0")
    A("v_bfe_u32 v3, v0, 1, 3")
    A("v_lshrrev_b32 v4, 4, v0")
    A(f"v_mul_u32_u24 v5, {KO-KE-8}, v2")
    A(f"v_sub_u32 v5, {KO}, v5")
    A("v_lshl_add_u32 v5, v3, 3, v5")
    A("v_lshl_add_u32 v5, v4, 4, v5")
    A("v_add_u32 v212, s75, v5")
    A(f"v_mul_u32_u24 v5, {U0-U1}, v2")
    A(f"v_sub_u32 v5, {U0+448}, v5")
    A("v_lshlrev_b32 v6, 6, v3")
    A("v_sub_u32 v5, v5, v6")
    A("v_lshl_add_u32 v5, v4, 4, v5")
    A("v_add_u32 v213, s76, v5")
    A("v_lshlrev_b32 v5, 6, v3")
    A("v_lshl_add_u32 v5, v4, 4, v5")
    A("v_lshl_add_u32 v214, v2, 3, v5")
    A("v_lshl_add_u32 v5, v3, 2, v2")
    A("v_lshl_add_u32 v5, v4, 3, v5")
    A("v_sub_u32 v5, 29, v5")
    A("v_mov_b32 v6, 0xffff")
    A("v_mov_b32 v7, 0xffff0000")
    for d in range(4):
        A(f"v_cmp_eq_u32 vcc, {2*d}, v5")
        A(f"v_cmp_eq_u32 s[84:85], {2*d+1}, v5")
        A("s_nop 1")
        A(f"v_cndmask_b32 v{216+d}, 0, v6, vcc")
        A(f"v_cndmask_b32 v{216+d}, v{216+d}, v7, s[84:85]")
    A.srd(88, P_WS, NB, WS_YT)
    FA, FB, ACC, AD, PK = [8, 72], [40, 104], [136, 168], 220, 224
    def reads(buf, r, s, tiles):
        L = []
        mx = max(tiles)
        for q in range(mx + 1):
            e = 8 * q + r
            L.append(f"ds_read_b128 {vr(FB[s]+4*q,4)}, v213 offset:{buf*UBUF+64*(56-(8*q-r))}")
            L.append(f"ds_read_b64 {vr(FA[s]+4*q,2)}, v212 offset:{buf*KBUF+64*e}")
            L.append(f"ds_read_b64 {vr(FA[s]+4*q+2,2)}, v212 offset:{buf*KBUF+64*e+8}")
        return L
    def dfrag(sreg, hi):
        L = [f"s_lshr_b32 s72, s{sreg}, 16" if hi else f"s_and_b32 s72, s{sreg}, 0xffff", "s_mul_i32 s72, s72, 0x10001"]
        return L + [f"v_and_b32 v{AD+d}, s72, v{216+d}" for d in range(4)]
    def epi(n, a, tiles):
        L = []
        for k, c in enumerate(tiles):
            p = PK + 2 * (k % 4)
            L.append(f"v_cvt_pk_bf16_f32 v{p}, v{ACC[a]+4*c}, v{ACC[a]+4*c+1}")
            L.append(f"v_cvt_pk_bf16_f32 v{p+1}, v{ACC[a]+4*c+2}, v{ACC[a]+4*c+3}")
            L.append((f"buffer_store_dwordx2 {vr(p,2)}, v214, s[88:91], s{63+n} offen offset:{c*512}{st}", "yst"))
        return L
    def channel(n, buf, a, tiles, pre, nxt, last):
        for r in range(8):
            s = r & 1
            A("s_waitcnt lgkmcnt(0)")
            M = []
            if r == 0:
                for c in tiles:
                    M.append([f"v_mfma_f32_16x16x32_bf16 {vr(ACC[a]+4*c,4)}, {vr(AD,4)}, {vr(FB[s]+4*c,4)}, 0"])
            for q in range(8):
                for c in tiles:
                    if c >= q:
                        M.append([f"v_mfma_f32_16x16x32_bf16 {vr(ACC[a]+4*c,4)}, {vr(FA[s]+4*q,4)}, {vr(FB[s]+4*(c-q),4)}, {vr(ACC[a]+4*c,4)}"])
            F = []
            if r < 7: F += reads(buf, r + 1, s ^ 1, tiles)
            if r == 1: F += pre
            F += C.get("cfill", {}).get((n, r), [])
            if r == 7 and nxt:
                F += [lambda t=nxt[2]: A.vmwait(t)] + reads(nxt[0], 0, s ^ 1, nxt[1]) + last
            rest = interleave(A, M, F, rate=max(1.0, len(F) / max(1, len(M) - 6)))
            for x in rest: emit(A, x)
    full = list(range(8))
    for x in dfrag(73, 0): A(x)
    A.vmwait("u0")
    for x in reads(0, 0, 0, full): A(x)
    channel(0, 0, 0, full, C.get('pre0', []), (1, full, "u1"), dfrag(73, 1) + kdma(A, 2, 0) + kpatch(2, 0) + udma(A, C, 2, 0))
    A("s_lshr_b32 s72, s3, 1")
    A("s_lshl_b32 s72, s72, 4")
    A("s_lshr_b32 s74, s74, s72")
    channel(1, 1, 1, full, epi(0, 0, full) + C.get('pre1', []), (0, full, "u2"), dfrag(74, 0))
    La, Lb = A.newlabel("cvh"), A.newlabel("cve")
    A("s_bitcmp1_b32 s3, 0")
    A(f"s_cbranch_scc1 {La}")
    vm0 = list(A.vm)
    for hf, tiles in enumerate(([0, 3, 4, 7], [1, 2, 5, 6])):
        A.vm = list(vm0)
        channel(2, 0, 0, tiles, epi(1, 1, full), None, [])
        A("s_nop 7")
        for x in epi(2, 0, tiles): emit(A, x)
        if hf == 0:
            A(f"s_branch {Lb}"); A.label(La)
    A.label(Lb)
```

```python
from base import *
SLOT, UOFF = 37120, 18560
X0 = 8
ACCV = 168
POOL = 96
def accreg(j, n=16, o=0):
    return vr(ACCV + 16 * j + o, n) if j < 3 else ar(16 * (j - 3) + o, n)
def g1(A, C):
    st, LASTN = C["st"], C.get("lastn", 12)
    A.srd(32, P_Q, NB)
    A("s_lshl_b32 s48, s30, 2"); A("s_add_u32 s48, s48, s3")
    A("s_mul_i32 s49, s48, 40960")
    A("s_mul_i32 s50, s3, 40960")
    A("s_mul_i32 s50, s3, 8192")
    kv = C.get("kvgen")
    if kv: next(kv)
    A("v_lshrrev_b32 v2, 4, v0"); A("v_and_b32 v3, 15, v0")
    for i in range(4):
        A(f"v_add_u32 v4, {4*i}, v2"); A("v_xor_b32 v5, v3, v4"); A("v_mul_u32_u24 v4, 1280, v4"); A(f"v_lshl_add_u32 v{216+i}, v5, 4, v4")
    A("s_add_u32 s51, s49, 20480")
    def xdma(c):
        for i in range(8):
            A(f"s_add_u32 m0, s50, {c*32768+i*1024-c*256}"); A("s_nop 0")
            A.vmop(f"buffer_load_dwordx4 v{216+(i&3)}, s[32:35], s{49 if i<4 else 51} offen offset:{c*256} lds", f"x{c}")
    NX0 = C.get("nx0", 3)
    for c in range(NX0): xdma(c)
    A("s_cmp_lt_u32 s3, 2")
    A(f"s_cselect_b32 s36, s{P_WG}, s{P_WU}"); A(f"s_cselect_b32 s37, s{P_WG+1}, s{P_WU+1}")
    A("s_mov_b32 s38, 2211840"); A("s_mov_b32 s39, 0x20000")
    A("s_and_b32 s55, s3, 1"); A("s_mul_i32 s52, s55, 576"); A("s_mul_i32 s53, s55, 9216")
    A("s_lshr_b32 s55, s3, 1"); A(f"s_mul_i32 s55, s55, {UOFF}"); A("s_add_u32 s53, s53, s55")
    A("s_mul_i32 s54, s31, 288")
    for i in range(9):
        A(f"v_add_u32 v2, {64*i}, v0"); A("v_add_u32 v2, s52, v2")
        A("v_mul_u32_u24 v3, 58255, v2"); A("v_lshrrev_b32 v3, 20, v3")
        A("v_mul_u32_u24 v4, 18, v3"); A("v_sub_u32 v4, v2, v4")
        A("v_mul_u32_u24 v3, 3456, v3")
        A(f"v_lshl_add_u32 v{224+i}, v4, 4, v3")
        A(f"v_add_u32 v{224+i}, s54, v{224+i}")
    if C.get("wtouch", 0):
        A("v_lshrrev_b32 v2, 2, v0"); A("v_mul_u32_u24 v2, 3456, v2"); A("v_and_b32 v3, 3, v0"); A("v_min_u32 v3, 2, v3")
        A("v_lshl_add_u32 v2, v3, 7, v2"); A("s_and_b32 s59, s3, 1"); A("s_mul_i32 s59, s59, 55296"); A("s_and_b32 s55, s54, 0xffffff80")
        A("s_add_u32 s59, s59, s55")
        for i in range(C.get("wtouch_n", 8)):
            A.vmop(f"buffer_load_dword v{244+i}, v2, s[36:39], s59 offen", "wt")
            A("s_add_u32 s59, s59, 110592")
    A("v_and_b32 v2, 31, v0"); A("v_lshrrev_b32 v3, 5, v0"); A("v_and_b32 v4, 15, v0"); A("v_xor_b32 v4, v4, v3")
    A("v_lshlrev_b32 v5, 8, v2"); A("v_add_u32 v5, s50, v5")
    for b in range(8):
        A(f"v_xor_b32 v6, {2*b}, v4"); A(f"v_lshl_add_u32 v{ACCV+b}, v6, 4, v5")
    A("v_bfe_u32 v4, v0, 2, 2"); A("v_lshl_add_u32 v4, v3, 3, v4"); A("v_mul_u32_u24 v4, 288, v4")
    A("v_and_b32 v5, 1, v0"); A("v_lshl_add_u32 v4, v5, 4, v4"); A("v_bfe_u32 v5, v0, 1, 1"); A("v_lshl_add_u32 v4, v5, 3, v4")
    A("v_bfe_u32 v5, v0, 4, 1"); A(f"v_mul_u32_u24 v5, {UOFF}, v5"); A("v_add_u32 v233, v4, v5")
    for s in range(1, 4): A(f"v_add_u32 v{233+s}, {s*SLOT}, v233")
    A("v_and_b32 v4, 9, v0"); A("v_bfe_u32 v5, v0, 1, 1"); A("v_lshl_add_u32 v4, v5, 2, v4"); A("v_bfe_u32 v5, v0, 2, 1"); A("v_lshl_add_u32 v4, v5, 1, v4")
    A("v_lshlrev_b32 v4, 4, v4"); A("v_lshl_add_u32 v4, v3, 8, v4"); A("v_bfe_u32 v5, v0, 4, 1"); A("v_mul_u32_u24 v5, 55296, v5"); A("v_add_u32 v237, v4, v5")
    A("v_lshlrev_b32 v238, 3, v2")
    A.srd(40, P_WS, 7077888, WS_H); A.srd(44, P_WS, 16384, WS_ST)
    A("s_mul_i32 s56, s48, 110592"); A("s_mul_i32 s57, s31, 4608"); A("s_add_u32 s56, s56, s57"); A("s_add_u32 s57, s56, 4096")
    A("s_lshl_b32 s58, s48, 8")
    if C.get("early"): C["early"](A)
    if kv: next(kv)
    C["stamp"](A, 1)
    def wdma(stage):
        L = [f"s_mov_b32 s59, {stage*221184}"]
        for i in range(9):
            L.append(f"s_add_u32 m0, s53, {(stage%4)*SLOT+i*1024}")
            L.append(["s_nop 0", (f"buffer_load_dwordx4 v{224+i}, s[36:39], s59 offen lds", f"w{stage}")])
        return L
    def flat(L):
        o = []
        for x in L: o += x if isinstance(x, list) else [x]
        return o
    S1, S2 = [220, 221], [222, 223]
    for r in S1 + S2: A(f"v_mov_b32 v{r}, 0")
    A("s_mov_b32 s60, 0x3f803f80")
    NW0 = C.get("nw0", 2)
    def stats(c):
        return [[f"v_dot2c_f32_bf16 v{S1[i&1]}, s60, v{X0+i}", f"v_dot2c_f32_bf16 v{S2[i&1]}, v{X0+i}, v{X0+i}"] for i in range(32 * c, 32 * c + 32)]
    XR = C.get("xorder", [0, 1, 2, 3, 4])
    for c in range(5):
        if c + NX0 < 5: xdma(c + NX0)
        if kv and c == C.get('kvf', 1): next(kv)
        if C.get('afterkv') and c == C.get('gtc', 4): C['afterkv'](A)
        A.vmwait(f"x{c}")
        if c == 0: C["stamp"](A, 2)
        if c == C.get("sc", 3): C["stamp"](A, 11)
        if c == 2 or c == 4:
            for b in range(8): A(f"v_add_u32 v{ACCV+b}, 65536, v{ACCV+b}")
        for s in range(8):
            A(f"ds_read_b128 {vr(X0+4*(8*c+s),4)}, v{ACCV+s} offset:{32768*(c&1)}")
        if c > 0:
            for x in stats(c - 1)[:16]: A(x[0]); A(x[1])
        A("s_waitcnt lgkmcnt(0)")
        dm = []
        if c > 0:
            A("s_barrier")
            if c - 1 < NW0:
                w = wdma(c - 1); dm.append(w[0])
                for i in range(9): dm.append(lambda a=w[1+2*i], b=w[2+2*i]: (A(a), A(b[0]), emit(A, b[1])))
            interleave(A, stats(c - 1)[16:], dm)
    for x in stats(4): A(x[0]); A(x[1])
    A("s_nop 2")
    A("v_add_f32 v216, v220, v221"); A("v_add_f32 v218, v222, v223")
    A("s_nop 0"); A("v_mov_b32 v217, v216"); A("v_mov_b32 v219, v218"); A("s_nop 1")
    A("v_permlane32_swap_b32 v216, v217"); A("v_permlane32_swap_b32 v218, v219"); A("s_nop 1")
    A("v_add_f32 v216, v216, v217"); A("v_add_f32 v218, v218, v219")
    A("v_mul_f32 v216, 0x3acccccd, v216"); A("v_mul_f32 v218, 0x3acccccd, v218")
    A("v_fma_f32 v218, -v216, v216, v218"); A("v_max_f32 v218, 0, v218")
    A("v_cvt_pk_bf16_f32 v217, v216, v218")
    A("v_lshlrev_b32 v216, 16, v217"); A("v_and_b32 v218, 0xffff0000, v217")
    A("v_add_f32 v218, 0x3727c5ac, v218"); A("v_cvt_pk_bf16_f32 v218, v218, v218"); A("v_lshlrev_b32 v218, 16, v218")
    A("v_sqrt_f32 v218, v218"); A("s_nop 0"); A("v_cvt_pk_bf16_f32 v218, v218, v218"); A("v_lshlrev_b32 v218, 16, v218")
    A("v_rcp_f32 v220, v218"); A("s_nop 0"); A("v_mul_f32 v221, v216, v220"); A("v_sub_f32 v221, 0, v221")
    Ls = A.newlabel("nost")
    A("s_cmp_lg_u32 s31, 0"); A(f"s_cbranch_scc1 {Ls}")
    A(f"buffer_store_dwordx2 v[220:221], v238, s[44:47], s58 offen{st}")
    A.label(Ls)
    A("s_mov_b32 s61, 0xffff0000")
    A("v_mul_f32 v222, 0xbfb8aa3b, v220")
    nq = []
    for g in range(80):
        r = X0 + 2 * g
        nq += [f"v_lshlrev_b32 v240, 16, v{r}", f"v_and_b32 v241, s61, v{r}", f"v_lshlrev_b32 v242, 16, v{r+1}", f"v_and_b32 v243, s61, v{r+1}",
               "v_sub_f32 v240, v240, v216", "v_sub_f32 v241, v241, v216", "v_sub_f32 v242, v242, v216", "v_sub_f32 v243, v243, v216",
               f"v_cvt_pk_bf16_f32 v{r}, v240, v241", f"v_cvt_pk_bf16_f32 v{r+1}, v242, v243"]
    NP = C.get("npre", 20)
    for x in nq[:NP]: A(x)
    nq = nq[NP:]
    C["stamp"](A, 12)
    A.vmwait("w0")
    A("s_barrier")
    if C.get("afterbar"): C["afterbar"](A)
    C["stamp"](A, 3)
    NK = 40 - LASTN
    order = [(k, j) for k in range(NK) for j in range(9)] + [(k, j) for j in range(9) for k in range(NK, 40)]
    def rd(m):
        k, j = order[m]; p = POOL + 4 * (m % 9); base = 233 + (k // 4) % 4; off = (k % 4) * 4608 + 32 * j
        return [f"ds_read_b64_tr_b16 {ar(p,2)}, v{base} offset:{off}", f"ds_read_b64_tr_b16 {ar(p+2,2)}, v{base} offset:{off+1152}"]
    for m in range(6):
        for x in rd(m): A(x)
    def epi(j):
        L = []; T = X0 + (j & 1) * 40; G, U, P = T, T + 8, T + 16
        acc = j >= 3
        g = (lambda i: G + i) if acc else (lambda i: ACCV + 16 * j + i)
        u = (lambda i: U + i) if acc else (lambda i: ACCV + 16 * j + 8 + i)
        stg = [lambda i: f"v_accvgpr_read_b32 v{G+i}, a{16*(j-3)+i}" if acc else None,
               lambda i: f"v_mul_f32 v{G+i}, v222, v{g(i)}",
               lambda i: f"v_exp_f32 v{G+i}, v{G+i}",
               lambda i: f"v_accvgpr_read_b32 v{U+i}, a{16*(j-3)+8+i}" if acc else None,
               lambda i: f"v_fma_f32 v{G+i}, v{G+i}, v218, v218",
               lambda i: f"v_rcp_f32 v{G+i}, v{G+i}",
               lambda i: None,
               lambda i: f"v_mul_f32 v{G+i}, v{G+i}, v{u(i)}",
               lambda i: f"v_cvt_pk_bf16_f32 v{P+i//2}, v{G+i-1}, v{G+i}" if i & 1 else None]
        for t in range(8 + len(stg) - 1):
            for q in range(len(stg) - 1, -1, -1):
                i = t - q
                if 0 <= i < 8 and stg[q](i): L.append(stg[q](i))
            if t >= 12: L.append("s_nop 0")
        L.append((f"buffer_store_dwordx4 {vr(P,4)}, v237, s[40:43], {'s56' if j<8 else 's57'} offen offset:{(j%8)*512}{st}", "h"))
        return L
    if C.get("xnonorm"): nq = nq[:20]
    nrate = len(nq) / (NK * 9 - 4); ndone = 0
    lastbar = 0; dq = []; eq = []; DSP = C.get("dsp", 3); nxt = 0; pend = list(range(NW0, 10))
    need = {}
    for m, (k, j) in enumerate(order): need.setdefault(k // 4, max(0, m - 6))
    free = {}
    for m, (k, j) in enumerate(order): free[k // 4] = m + 1
    bars = {}
    for s in range(1, 10):
        pos = [p for p in range(0, NK * 9 + 1, 36) if p <= need[s]][-1] + C.get("boff", 0)
        if s == 1: pos = 18 if NW0 > 1 else 30
        if s > NK // 4 or pos > need[s]: pos = need[s] // 3 * 3
        bars.setdefault(pos, []).append(s)
    for s in range(4, 10): bars.setdefault(free[s - 4] + C.get("boff", 0), [])
    for m, (k, j) in enumerate(order):
        if m in bars:
            if bars[m]:
                assert max(bars[m]) not in pend and not any(isinstance(x, list) and x[1][1] == f"w{max(bars[m])}" for x in dq), (m, bars)
                A.vmwait(f"w{max(bars[m])}")
            A("s_barrier"); lastbar = m
        if not dq and pend and (pend[0] < 4 or (lastbar >= free[pend[0] - 4])):
            cur = pend.pop(0); dq = wdma(cur); nxt = m
        if m == NK * 9: C["stamp"](A, 4)
        if m % 3 == 0: A(f"s_waitcnt lgkmcnt({6 if m + 3 < 360 else 0})")
        c = accreg(j)
        A(f"v_mfma_f32_32x32x16_bf16 {c}, {ar(POOL+4*(m%9),4)}, {vr(X0+4*k,4)}, {c if k else 0}")
        rq = rd(m + 6) if m + 6 < 360 else []
        if m < NK * 9 or not C.get("shadow", 0):
            for x in rq: A(x)
            rq = []
        NMAX = C.get("nmax", 4); nf = NMAX
        for x in C.get("g1fill", {}).get(m, []): emit(A, x)
        if dq and isinstance(dq[0], list):
            emit(A, dq.pop(0)[1]); nf = C.get("ndma", 0)
            nxt = m + (DSP if cur < 9 or LASTN == 8 else 2) - 1
        if dq and m >= nxt:
            x = dq.pop(0)
            if x.startswith("s_mov"): A(x); x = dq.pop(0); nf -= 1
            A(x); nf -= 1
        must = min(len(nq), 20 * ((m + 2) // 9 + 1) - NP) if m + 2 < NK * 9 else len(nq)
        tgt = max(must, min(len(nq), ndone + max(nf, 0), int((m + 1) * nrate * 1.15) + 4))
        while ndone < tgt: A(nq[ndone]); ndone += 1
        if m >= NK * 9:
            kk = k - NK
            if kk == 0:
                for x in eq: emit(A, x)
                eq = (["s_nop 3"] if j == 8 else []) + epi(j - 1) if j > 0 else []
                ne = len(eq)
            S = 3 if LASTN == 8 else 2
            if kk >= S:
                keep = ne - (kk - S + 1) * ne // (LASTN - S)
                while len(eq) > keep:
                    x = eq.pop(0); emit(A, x)
                    if rq and isinstance(x, str) and x[:5] in ("v_exp", "v_rcp"): A(rq.pop(0))
            for x in rq: A(x)
    C["stamp"](A, 5)
    if C.get("endbar") == 1: A("s_barrier")
    A("s_nop 7"); A("s_nop 3")
    for x in epi(8): emit(A, x)
    if C.get("endbar") == 2: A("s_barrier")
```

```python
from base import *
WS_R, WS_MB, WS_KMB, WS_WT = 0xC08000, 0xC10000, 0xC50000, 0x1000000
def epoch_load(A):
    A(f"s_mov_b32 s92, {WS_R}"); A(f"s_load_dword s101, s[{P_WS}:{P_WS+1}], s92")
def epoch_fin(A):
    A("s_mul_i32 s100, s101, 0x9E3779B1"); A("s_add_u32 s100, s100, 0x7F4A7C15")
def kvtask(A, C, W, sT, D, S, T=None, AD=None, first=True, tg=""):
    st = C["st"]; K, V, SH, O = S, S + 4, S + 8, S + 12; sl, sg, so, s2 = S + 16, S + 17, S + 18, S + 19
    lw = {1: 0, 2: 1, 4: 2}[W]
    if first: A.srd(K, P_K, NB); A.srd(V, P_V, NB); A.srd(SH, P_SH, 5120)
    else: sl, sg, so, s2 = sT + 1, sT + 2, sT + 3, sT + 4
    A(f"s_mul_i32 s{sl}, s{sT}, 52429"); A(f"s_lshr_b32 s{sl}, s{sl}, 21")
    A(f"s_mul_i32 s{sg}, s{sl}, 40"); A(f"s_sub_u32 s{sg}, s{sT}, s{sg}")
    A(f"s_mul_i32 s{so}, s{sl}, 81920"); A(f"s_lshl_b32 s{s2}, s{sg}, 5"); A(f"s_add_u32 s{so}, s{so}, s{s2}")
    A("v_and_b32 v2, 7, v0"); A("v_lshrrev_b32 v3, 3, v0")
    A("v_mul_u32_u24 v5, 10240, v3"); A(f"v_lshl_add_u32 v5, v2, {2+lw}, v5"); A(f"v_add_u32 v5, s{so}, v5")
    A("v_subrev_u32 v6, 3840, v5")
    A(f"v_lshlrev_b32 v7, {4+lw}, v2"); A(f"s_lshl_b32 s{s2}, s{sg}, 7"); A(f"s_movk_i32 s{so}, 5120")
    ld = "buffer_load_dword" + {1: "", 2: "x2", 4: "x4"}[W]
    b = D; bs = D + 19 * W + (19 * W & 1)
    for h in range(W): A.vmop(f"buffer_load_dwordx4 {vr(bs+4*h,4)}, v7, s[{SH}:{SH+3}], s{s2} offen offset:{16*h}", "kv" + tg)
    for i in range(3): A.vmop(f"{ld} {vr(b+W*i,W)}, v6, s[{K}:{K+3}], 0 offen offset:{i*1280}", "kv" + tg)
    for i in range(8):
        sof = "0" if i < 4 else f"s{so}"
        A.vmop(f"{ld} {vr(b+W*(3+i),W)}, v5, s[{K}:{K+3}], {sof} offen offset:{(i%4)*1280}", "kv" + tg)
        A.vmop(f"{ld} {vr(b+W*(11+i),W)}, v5, s[{V}:{V+3}], {sof} offen offset:{(i%4)*1280}", "kv" + tg)
    shared = T is not None
    if not shared: T = bs + 4 * W
    Kp, Wp, Oo, PK = T, T + 22, T + 30, T + 46
    if not shared: AD = PK + 8 * W
    if first: A.srd(O, P_WS, NB)
    A(f"v_lshlrev_b32 v{AD}, {13+lw}, v3"); A(f"v_lshl_add_u32 v{AD}, v2, 4, v{AD}")
    A("v_sub_u32 v4, 7, v2"); A("v_lshl_add_u32 v4, v4, 3, v3"); A(f"v_lshlrev_b32 v{AD+3}, 2, v4")
    A(f"v_lshrrev_b32 v3, 2, v0"); A(f"v_add_u32 v3, s{sg}, v3"); A("v_lshlrev_b32 v4, 4, v3")
    A("v_mul_u32_u24 v5, 6554, v4"); A("v_lshrrev_b32 v5, 16, v5"); A("v_and_b32 v6, 3, v0"); A("v_add_u32 v5, v5, v6")
    A("v_mul_u32_u24 v6, 10, v5"); A("v_add_u32 v4, 15, v4"); A("v_cmp_le_u32 vcc, v6, v4")
    A(f"v_cmp_gt_u32 s[92:93], {4*W}, v0"); A("v_lshrrev_b32 v6, 4, v6"); A("v_sub_u32 v3, v3, v6")
    A(f"s_and_b64 vcc, vcc, s[92:93]")
    A("v_lshlrev_b32 v5, 8, v5"); A("v_lshl_add_u32 v5, v3, 7, v5"); A(f"s_lshl_b32 s{s2}, s{sl}, 2"); A(f"v_add_u32 v5, s{s2}, v5")
    A("v_mov_b32 v6, 0x40000000"); A(f"v_cndmask_b32 v{AD+1}, v6, v5, vcc")
    A(f"s_sub_u32 s{so}, 31, s{sl}"); A(f"s_lshl_b32 s{so}, s{so}, 7"); A(f"s_lshl_b32 s{s2}, s{sg}, 16"); A(f"s_add_u32 s{so}, s{so}, s{s2}")
    yield "issued"
    if first: A("s_waitcnt lgkmcnt(0)"); epoch_fin(A)
    A(f"s_mov_b32 s{s2}, 0xffff0000")
    A.vmwait("kv" + tg)
    if W > 1: C["stamp"](A, 3)
    for h in range(W):
        for j in range(4):
            for ch in range(2):
                src = bs + 4 * h + ch * 2 + (j >> 1)
                A(f"v_and_b32 v{Wp+2*j+ch}, s{s2}, v{src}" if j & 1 else f"v_lshlrev_b32 v{Wp+2*j+ch}, 16, v{src}")
        for i in range(11):
            A(f"v_lshlrev_b32 v{Kp+2*i}, 16, v{b+W*i+h}"); A(f"v_and_b32 v{Kp+2*i+1}, s{s2}, v{b+W*i+h}")
        for r in range(8): A(f"v_pk_mul_f32 {vr(Oo+2*r,2)}, {vr(Wp+6,2)}, {vr(Kp+2*r,2)}")
        for j in (2, 1, 0):
            for r in range(8): A(f"v_pk_fma_f32 {vr(Oo+2*r,2)}, {vr(Wp+2*j,2)}, {vr(Kp+2*(r+3-j),2)}, {vr(Oo+2*r,2)}")
        for r in range(8):
            A(f"v_lshlrev_b32 v{Kp+2*r}, 16, v{b+W*(11+r)+h}"); A(f"v_and_b32 v{Kp+2*r+1}, s{s2}, v{b+W*(11+r)+h}")
        for r in range(8): A(f"v_pk_mul_f32 {vr(Oo+2*r,2)}, {vr(Oo+2*r,2)}, {vr(Kp+2*r,2)}")
        for ch in range(2):
            p = PK + 8 * (h & 1 if shared else h) + 4 * ch
            for q in range(4): A(f"v_cvt_pk_bf16_f32 v{p+q}, v{Oo+2*(7-2*q)+ch}, v{Oo+2*(6-2*q)+ch}")
            for q in range(4): A(f"ds_bpermute_b32 v{p+q}, v{AD+3}, v{p+q}")
        for ch in range(2):
            p = PK + 8 * (h & 1 if shared else h) + 4 * ch
            A(f"s_waitcnt lgkmcnt({4-4*ch})")
            A.vmop(f"buffer_store_dwordx4 {vr(p,4)}, v{AD}, s[{O}:{O+3}], s{so} offen{st}", "kvst" + tg)
            if 2 * h + ch < 2 * W - 1: A(f"s_add_u32 s{so}, s{so}, 4096")
    C["kv_top"] = AD + 4
    if W == 2 or tg: C["stamp"](A, 4)
    yield "stored"
    if first: A.srd(K, P_WS, 16384, WS_KMB)
    A(f"v_mov_b32 v{AD+2}, s100")
    A.vmwait("kvst" + tg)
    A.vmop(f"buffer_store_dword v{AD+2}, v{AD+1}, s[{K}:{K+3}], 0 offen sc1", "fl")
    yield "done"
def poll(A, srd, soff, vtmp, vaddr, mask, cnt):
    L, Ld = A.newlabel("poll"), A.newlabel("polld")
    A(f"s_mov_b32 s{cnt}, 30000")
    A.label(L)
    A(f"buffer_load_dword v{vtmp}, v{vaddr}, s[{srd}:{srd+3}], {soff} offen sc1")
    A("s_waitcnt vmcnt(0)"); A.vm = []
    A(f"v_cmp_ne_u32 vcc, s100, v{vtmp}")
    A(f"s_and_b64 vcc, vcc, {mask}")
    A(f"s_cbranch_vccz {Ld}")
    A(f"s_sub_u32 s{cnt}, s{cnt}, 1")
    A(f"s_cbranch_scc0 {L}")
    A.label(Ld)
```

```python
import sys, json
from base import *
import p_conv, p_g1, p_g2
NAME = "recurrent_scan__ssm_conv_h3__glu_gated_glu__prompt"
def mkstamp(on):
    def stamp(A, idx, real=False):
        if not on: return
        A("s_memrealtime s[92:93]" if real else "s_memtime s[92:93]")
        A("s_waitcnt lgkmcnt(0)")
        A(f"v_writelane_b32 v255, s92, {idx}")
    return stamp
def head(A, name, nwg, C):
    A.L.append(f".text\n.globl {name}\n.p2align 8\n.type {name},@function\n{name}:")
    A("s_load_dwordx16 s[4:19], s[0:1], 0"); A("s_load_dwordx8 s[20:27], s[0:1], 64"); A("s_load_dwordx2 s[28:29], s[0:1], 96")
    A(f"s_cmp_ge_u32 s2, {nwg}"); A(f"s_cbranch_scc1 {name}_end")
    A("v_mov_b32 v1, v0"); A("v_lshrrev_b32 v2, 6, v0"); A("v_and_b32 v0, 63, v0"); A("v_readfirstlane_b32 s3, v2")
    if C.get("pre"): A("s_nop 3"); C["pre"](A)
    if C["diag"]: A("v_mov_b32 v255, 0")
    C["stamp"](A, 14, True); C["stamp"](A, 0)
    A("s_waitcnt lgkmcnt(0)")
def tail(A, name, C, knum, nv, acc):
    if C["diag"]:
        A("s_waitcnt vmcnt(0)")
        C["stamp"](A, 13); C["stamp"](A, 15, True)
        A.srd(88, P_WS, 0x100000, WS_DIAG + knum * 0x40000)
        A("s_lshl_b32 s92, s2, 2"); A("s_add_u32 s92, s92, s3"); A("s_lshl_b32 s92, s92, 8"); A("v_lshlrev_b32 v2, 2, v0")
        A("buffer_store_dword v255, v2, s[88:91], s92 offen")
    if C["diag"] == 2:
        A.srd(88, P_DBG, 256)
        A("v_readlane_b32 s92, v255, 0"); A("v_readlane_b32 s93, v255, 14"); A("v_readlane_b32 s94, v255, 15"); A("s_not_b32 s93, s93")
        A("v_subrev_u32 v3, s92, v255"); A("v_mov_b32 v4, 0x40000000"); A("v_cmp_gt_u32 vcc, 14, v0"); A("s_nop 1"); A("v_cndmask_b32 v5, v4, v2, vcc")
        A(f"s_cmp_eq_u32 s2, {C.get('dwg', 100)}"); A("s_cselect_b32 s95, 0, 0x40000000"); A("s_cmp_eq_u32 s3, 0"); A("s_cselect_b32 s95, s95, 0x40000000"); A("s_cselect_b32 s96, 56, 0x40000000")
        A("buffer_store_dword v3, v5, s[88:91], s95 offen")
        A("v_mov_b32 v6, s94"); A("v_mov_b32 v7, s93"); A("v_cmp_eq_u32 vcc, 0, v0"); A("s_nop 1"); A("v_cndmask_b32 v6, v7, v6, vcc")
        A("v_cmp_gt_u32 vcc, 2, v0"); A("s_nop 1"); A("v_cndmask_b32 v5, v4, v2, vcc")
        A("buffer_atomic_umax v6, v5, s[88:91], s96 offen")
    A.label(f"{name}_end"); A("s_endpgm")
    A.L.append(f""".section .rodata,"a"
.p2align 6
.amdhsa_kernel {name}
  .amdhsa_next_free_vgpr {nv}
  .amdhsa_next_free_sgpr 102
  .amdhsa_accum_offset {acc}
  .amdhsa_group_segment_fixed_size 0
  .amdhsa_kernarg_size 104
  .amdhsa_user_sgpr_count 2
  .amdhsa_user_sgpr_kernarg_segment_ptr 1
  .amdhsa_system_sgpr_workgroup_id_x 1
.end_amdhsa_kernel""")
def map1(A, C, Lconv):
    Cn = C.get("g1c", 6); R = 24 // Cn; per = 12 // Cn
    A("s_and_b32 s94, s2, 7"); A("s_lshr_b32 s95, s2, 3")
    A("s_lshl_b32 s30, s94, 3"); A("s_add_u32 s30, s30, s95")
    A("s_cmp_lt_u32 s95, 8"); A(f"s_cbranch_scc1 {Lconv}")
    A("s_sub_u32 s95, s95, 8")
    sh = {3: 9, 6: 10, 12: 11}[Cn]; lp = {1: 0, 2: 1, 4: 2}[per]
    A("s_mul_i32 s30, s95, 171"); A(f"s_lshr_b32 s30, s30, {sh}")
    A(f"s_mul_i32 s31, s30, {Cn}"); A("s_sub_u32 s31, s95, s31")
    A(f"s_lshr_b32 s96, s94, {lp}"); A(f"s_mul_i32 s96, s96, {R}"); A("s_add_u32 s30, s30, s96")
    A(f"s_and_b32 s96, s94, {per-1}"); A(f"s_mul_i32 s96, s96, {Cn}"); A("s_add_u32 s31, s31, s96")
def map2(A, C, r=30, c=31):
    A("s_and_b32 s94, s2, 7"); A("s_lshr_b32 s95, s2, 3")
    Cn = C.get("g2c", 8); lc = {8: 3, 4: 2, 2: 1}[Cn]; lp = 3 - lc
    A(f"s_lshr_b32 s{r}, s95, {lc}"); A(f"s_and_b32 s{c}, s95, {Cn-1}")
    A(f"s_lshr_b32 s96, s94, {lp}"); A(f"s_mul_i32 s96, s96, {32//Cn}"); A(f"s_add_u32 s{r}, s{r}, s96")
    A(f"s_and_b32 s96, s94, {(1<<lp)-1}"); A(f"s_lshl_b32 s96, s96, {lc}"); A(f"s_add_u32 s{c}, s{c}, s96")
def build(C):
    C.setdefault("diag", 0); C["stamp"] = mkstamp(C["diag"])
    mode = C.get("mode", 3)
    hdr = open("cdna_kernels/" + NAME + ".s.ref").read().split("; Override launch")[0]
    out = hdr
    A = Asm()
    if mode == 3:
        C.setdefault("st", ""); C.setdefault("ld", "")
        out += "; @launch kernel=kv_kernel grid=(64,1,1) block=(256,1,1) lds=112000\n"
        out += "; @launch kernel=ph1_kernel grid=(256,1,1) block=(256,1,1) lds=163840\n"
        out += "; @launch kernel=ph2_kernel grid=(256,1,1) block=(256,1,1) lds=163840\n"
        for i in range(C.get("extra", 0)): out += "; @launch kernel=nop_kernel grid=(256,1,1) block=(256,1,1) lds=0\n"
        head(A, "kv_kernel", 64, C); A("s_mov_b32 s30, s2")
        for _ in p_conv.kvprep(A, C): pass
        tail(A, "kv_kernel", C, 0, 256, 256); A.vm = []
        head(A, "ph1_kernel", 256, C); map1(A, C, "ph1_conv")
        p_g1.g1(A, C); A("s_branch ph1_fin"); A.vm = []
        A.label("ph1_conv"); p_conv.conv_early(A, C); p_conv.conv_pads(A, C); p_conv.conv_main(A, C)
        A.label("ph1_fin"); tail(A, "ph1_kernel", C, 1, 392, 256); A.vm = []
        head(A, "ph2_kernel", 256, C); map2(A, C); p_g2.g2_early(A, C); p_g2.g2_main(A, C)
        tail(A, "ph2_kernel", C, 2, 480, 256)
        if C.get("extra", 0):
            C2 = dict(C); C2["diag"] = 0; C2["stamp"] = mkstamp(0)
            head(A, "nop_kernel", 256, C2); tail(A, "nop_kernel", C2, 3, 32, 32)
    else:
        import fused
        out += fused.build(A, C, head, tail, map1, map2, NAME)
    for i, l in enumerate(A.L):
        if l.endswith(" sc1") and l.startswith("    buffer_load_dword v"): A.L[i] = l[:-4] + C.get("pl", " sc1")
        if l.endswith(" sc1") and l.startswith("    buffer_store_dword v"): A.L[i] = l[:-4] + C.get("fs", " sc1")
    out += '.amdgcn_target "amdgcn-amd-amdhsa--gfx950"\n' + A.text()
    return out
if __name__ == "__main__":
    C = {}
    for a in sys.argv[2:]:
        k, v = a.split("="); C[k] = int(v) if v.lstrip("-").isdigit() else v.replace("_", " ")
    open(sys.argv[1], "w").write(build(C))
```

```python
from base import *
import p_conv, p_g1, p_kv
from p_kv import WS_MB, WS_KMB, WS_WT, poll
WREG = 40960
WA = 244
YB = 2 * WREG + 35840
WP = 132
NR = 10
def wreg(i, o, n):
    return ar(WP + 20 * i + o, n) if i < 6 else vr(168 + 20 * (i - 8) + o, n) if i in (8, 9) else vr(80 + 20 * (i & 1) + o, n)
def accr(t): return vr(8 + 4 * t if t < 18 else 120 + 4 * (t - 18), 4)
def wsrc(A):
    for i in range(5):
        A(f"v_add_u32 v2, {64*i}, v0")
        A("v_mul_u32_u24 v3, 6554, v2"); A("v_lshrrev_b32 v3, 16, v3")
        A("v_mul_u32_u24 v4, 10, v3"); A("v_sub_u32 v4, v2, v4")
        A("v_and_b32 v5, 19, v3"); A("v_bfe_u32 v6, v3, 2, 1"); A("v_lshl_add_u32 v5, v6, 3, v5"); A("v_bfe_u32 v6, v3, 3, 1"); A("v_lshl_add_u32 v5, v6, 2, v5")
        A("v_mul_u32_u24 v5, 1280, v5"); A(f"v_lshl_add_u32 v{236+i}, v4, 4, v5")
    A("v_lshrrev_b32 v2, 4, v0"); A("v_bfe_u32 v3, v0, 2, 2"); A("v_and_b32 v4, 3, v0")
    A("v_lshrrev_b32 v5, 1, v2"); A("v_lshl_add_u32 v5, v5, 4, v3"); A("v_and_b32 v6, 1, v2"); A("v_lshl_add_u32 v5, v6, 2, v5")
    A("v_mul_u32_u24 v5, 160, v5"); A("v_lshl_add_u32 v241, v4, 4, v5"); A("v_lshl_add_u32 v248, v4, 3, v5")
def early2(A, C, S, map2, O):
    A(f"v_lshlrev_b32 v{WA}, 4, v0"); A(f"v_add_u32 v{WA+1}, 4096, v{WA}"); A("v_lshlrev_b32 v254, 2, v0")
    A.srd(S, P_WS, 2211840, WS_WT); A.srd(S + 4, P_WS, 0x24000, WS_MB)
    map2(A, C, O + 1, O)
    A(f"s_lshl_b32 s{O+1}, s{O+1}, 3"); A(f"s_add_u32 s{O+1}, s{O+1}, s{O}"); A(f"s_lshl_b32 s{O+1}, s{O+1}, 9")
    A(f"s_mul_i32 s{O}, s{O}, 276480"); A("s_mul_i32 s94, s3, 5120"); A(f"s_add_u32 s{O}, s{O}, s94")
def wpre(A, C, S, O):
    rdf = [(f"buffer_load_dword v251, v254, s[{S+4}:{S+7}], s{O+1} offen offset:256 sc1", "wf")]
    def chk():
        Lk = A.newlabel("wok"); A.vmwait("wf"); vm = list(A.vm)
        A("s_mov_b32 s94, -1"); A("s_mov_b32 s95, 0")
        A("v_cmp_ne_u32 vcc, s100, v251"); A("s_and_b64 vcc, vcc, s[94:95]"); A(f"s_cbranch_vccz {Lk}")
        A(f"s_add_u32 s97, s{O+1}, 256")
        poll(A, S + 4, "s97", 251, 254, "s[94:95]", 96); A.label(Lk); A.vm = vm
    L = []
    for i in range(NR):
        for q in range(5):
            x = [(f"buffer_load_dwordx4 {wreg(i,4*q,4)}, v{WA+(q>>2)}, s[{S}:{S+3}], s{O} offen offset:{(q&3)*1024}{C['ld']}", "wp")]
            if q == 4: x.append(f"s_add_u32 s{O}, s{O}, 20480")
            L.append(x)
    if C.get("wt", 0):
        T = [f"s_bfe_u32 s94, s{O+1}, 0x2000c", f"s_bfe_u32 s95, s{O+1}, 0x30009", "s_lshl_b32 s94, s94, 2", "s_add_u32 s94, s94, s3", "s_mul_i32 s94, s94, 9600",
             "s_mul_i32 s95, s95, 276480", "s_add_u32 s94, s94, s95", "s_add_u32 s94, s94, 122880", "v_lshlrev_b32 v253, 7, v0", "v_min_u32 v252, 10, v0", "v_lshlrev_b32 v252, 7, v252",
             (f"buffer_load_dword v248, v253, s[{S}:{S+3}], s94 offen{C['ld']} ", "t"), "s_add_u32 s94, s94, 8192", (f"buffer_load_dword v248, v252, s[{S}:{S+3}], s94 offen{C['ld']} ", "t")]
        k = C["wt"] - 1; L[k] = L[k] + T
    return rdf, chk, L
def flagaddr(A, nl, sh, sreg):
    A(f"v_lshlrev_b32 v2, {sh}, v0"); A(f"v_add_u32 v2, s{sreg}, v2"); A("v_mov_b32 v3, 0x40000000")
    A(f"v_cmp_gt_u32 vcc, {nl}, v0"); A("s_nop 0"); A("v_cndmask_b32 v249, v3, v2, vcc")
def wd(C, i):
    L = [f"s_add_u32 m0, s58, {(13-i)*5120}", "s_nop 0" if i < 13 else "s_add_u32 s57, s57, s61"]
    for q in range(5):
        if q == 4: L += [f"s_add_u32 m0, s58, {(13-i)*5120+4096}", "s_nop 0"]
        L.append((f"buffer_load_dwordx4 v{WA+(q>>2)}, s[32:35], s57 offen offset:{(q&3)*1024}{C['ld']} lds", f"w{i}"))
    return L + ["s_add_u32 s57, s57, 20480"]
def hreg(i, o, n):
    return ar(16 * (i % 8) + o, n)
def hl(C, i):
    L = [f"s_add_u32 s67, s59, {i*4096}"]
    if i == 13: L.append("s_add_u32 s67, s67, s61")
    for nt in range(4):
        L.append((f"buffer_load_dwordx4 {hreg(i,4*nt,4)}, v{133+nt}, s[36:39], s67 offen{C['ld']}", f"h{i}"))
    return L
def trans(A, C, map2, tag, O):
    A(f"s_mov_b32 s57, s{O}"); A(f"s_mov_b32 s72, s{O+1}")
    A.srd(32, P_WS, 2211840, WS_WT); A.srd(68, P_WS, 0x24000, WS_MB)
    A(f"s_mul_i32 s58, s3, {WREG}"); A("s_cmp_lt_u32 s3, 2"); A("s_cselect_b32 s61, 0, 0x40000000")
    A("v_mov_b32 v250, s100")
    map2(A, C, 30, 31); A("s_mul_i32 s56, s31, 160")
    D = []
    for i in range(NR, NR + C.get("nw1", 2)):
        w = wd(C, i); D += [w[0:3], w[3:4], w[4:5], w[5:6], w[6:]]
    for x in interleave(A, D, setup2(A) if C.get("su", 0) else []): emit(A, x)
    A.vmwait(tag)
    A.vmop("buffer_store_dword v250, v249, s[68:71], 0 offen sc1", "fl")
    C["stamp"](A, 8)
def setup2(A):
    L = []; A = L.append
    def srd(d, base, size, off=None):
        t = Asm(); t.srd(d, base, size, off); L.extend(x.strip() for x in t.L)
    srd(36, P_WS, 7077888, WS_H); srd(40, P_WS, NB, WS_YT); srd(44, P_Q, NB); srd(48, P_WS, 16384, WS_ST); srd(52, P_OUT, NB)
    A("v_lshlrev_b32 v8, 4, v0")
    for n in range(4):
        A(f"s_add_u32 s60, s3, {n}"); A("s_and_b32 s60, s60, 3"); A("s_mul_i32 s60, s60, 55296"); A(f"v_add_u32 v{133+n}, s60, v8")
        if n: A(f"s_sub_u32 s60, s3, {n}"); A("s_and_b32 s60, s60, 3"); A(f"s_mul_i32 s60, s60, {WREG}"); A(f"v_add_u32 v{144+n}, s60, v8")
    A("s_mul_i32 s59, s30, 221184"); A("s_lshl_b32 s60, s3, 10"); A("s_add_u32 s59, s59, s60")
    A("v_lshrrev_b32 v2, 4, v0"); A("v_bfe_u32 v3, v0, 2, 2"); A("v_and_b32 v4, 3, v0")
    A("v_lshl_add_u32 v5, v2, 2, v3"); A("v_bfe_u32 v6, v5, 1, 2"); A("v_lshlrev_b32 v6, 1, v6")
    A("v_lshrrev_b32 v7, 1, v4"); A("s_lshl_b32 s60, s3, 1"); A("v_add_u32 v7, s60, v7"); A("v_xor_b32 v7, v7, v6"); A("v_lshlrev_b32 v7, 4, v7")
    A("v_and_b32 v6, 7, v5"); A("v_lshl_add_u32 v7, v6, 7, v7"); A("v_lshrrev_b32 v6, 3, v5"); A("v_lshl_add_u32 v7, v6, 10, v7"); A(f"v_add_u32 v7, {YB}, v7")
    A("v_and_b32 v6, 1, v4"); A("v_lshl_add_u32 v138, v6, 3, v7")
    A("v_lshrrev_b32 v7, 1, v4"); A("v_add_u32 v7, s60, v7"); A("v_and_b32 v5, 2, v3"); A("v_xor_b32 v7, v7, v5"); A("v_lshlrev_b32 v7, 4, v7")
    A("v_lshl_add_u32 v7, v3, 7, v7"); A("v_lshl_add_u32 v7, v6, 3, v7"); A("v_lshlrev_b32 v5, 10, v2"); A(f"v_add_u32 v5, {YB}, v5"); A("v_add_u32 v139, v7, v5")
    A("v_xor_b32 v7, 64, v7"); A("v_add_u32 v153, v7, v5")
    A("v_add_u32 v140, s58, v8")
    A("s_lshl_b32 s62, s30, 6"); A("s_lshl_b32 s60, s3, 4"); A("s_add_u32 s62, s62, s60")
    A("s_mul_i32 s63, s62, 1280"); A("s_add_u32 s63, s63, s56"); A("s_lshl_b32 s62, s62, 3")
    A("v_and_b32 v5, 9, v0"); A("v_bfe_u32 v6, v0, 1, 1"); A("v_lshl_add_u32 v5, v6, 2, v5"); A("v_bfe_u32 v6, v0, 2, 1"); A("v_lshl_add_u32 v5, v6, 1, v5")
    A("v_lshlrev_b32 v149, 3, v5"); A("v_mul_u32_u24 v5, 1280, v5"); A("v_lshl_add_u32 v143, v2, 4, v5"); A("v_lshl_add_u32 v144, v2, 3, v5")
    A("v_lshrrev_b32 v2, 3, v0"); A("v_bfe_u32 v3, v0, 4, 2"); A("v_lshlrev_b32 v3, 1, v3"); A("v_and_b32 v4, 7, v0"); A("v_xor_b32 v4, v4, v3")
    A("v_lshlrev_b32 v4, 4, v4"); A("v_lshl_add_u32 v152, v2, 12, v4")
    A("s_mul_i32 s64, s31, 327680"); A("s_lshl_b32 s60, s30, 7"); A("s_add_u32 s64, s64, s60"); A("s_and_b32 s65, s3, 1"); A("s_mul_i32 s60, s65, 163840"); A("s_add_u32 s64, s64, s60")
    A("s_mul_i32 s65, s65, 5120"); A(f"s_add_u32 s65, s65, {YB}")
    A("v_lshlrev_b32 v154, 2, v0"); A("v_min_u32 v128, 92, v154"); A("v_max_u32 v129, 128, v154")
    A("s_mov_b32 s74, 0xffffff"); A("s_mov_b32 s75, 0"); A("s_mov_b32 s76, 0"); A("s_mov_b32 s77, -1")
    O = []
    for x in L:
        if x.startswith(("s_addc", "s_cselect")): O[-1] += "\n    " + x
        else: O.append(x)
    return O
def g2(A, C):
    ld = C["ld"]; ACC = 8; HA, YA = (128, 129) if C.get("cl", 1) else (154, 154)
    def rd(i):
        return [f"ds_read_b128 {wreg(i,4*mt,4)}, v140 offset:{(13-i)*5120+1024*mt}" for mt in range(5)]
    n1 = C.get("nw1", 2); NPW = C.get("npw", 8)
    D = []
    for i in range(NR + n1, NR + NPW):
        w = wd(C, i); D += [w[0:3], w[3:4], w[4:5], w[5:6], w[6:]]
    for x in interleave(A, D, [] if C.get("su", 0) else setup2(A)): emit(A, x)
    C["stamp"](A, 9)
    if C.get("p1", 0):
        vm = list(A.vm); A("s_cmp_lg_u32 s3, 3"); A("s_cbranch_scc1 f_hok")
        poll(A, 68, "s72", 2, HA, "s[74:75]", 73); A.label("f_hok"); A("s_barrier"); A.vm = vm
    else: poll(A, 68, "s72", 2, HA, "s[74:75]", 73)
    C["stamp"](A, 10)
    NH = C.get("nh", 8); hq = []
    for i in range(14):
        if i < NH:
            for x in hl(C, i): emit(A, x)
        else: hq.append((i, hl(C, i)))
    wq = [(i, wd(C, i)) for i in range(NR + NPW, 14)]
    misc = []
    for q in range(5):
        misc += [f"s_add_u32 m0, s65, {q*1024}", f"s_add_u32 s66, s64, {q*32768}", (f"buffer_load_dwordx4 v152, s[40:43], s66 offen{ld} lds", "y")]
    xs = [("buffer_load_dwordx4 v[156:159], v143, s[44:47], s63 offen", "x"), ("buffer_load_dwordx4 v[160:163], v143, s[44:47], s63 offen offset:64", "x"),
          ("buffer_load_dwordx2 v[164:165], v144, s[44:47], s63 offen offset:128", "x"), (f"buffer_load_dwordx2 v[166:167], v149, s[48:51], s62 offen{ld}", "x")]
    XF, XN = 176, 196
    def last(i):
        A.vmwait("x")
        F = ["s_mov_b32 s66, 0xffff0000"]
        for d in range(10): F += [f"v_lshlrev_b32 v{XF+2*d}, 16, v{156+d}", f"v_and_b32 v{XF+2*d+1}, s66, v{156+d}"]
        F += [f"v_fma_f32 v{XN+d}, v{XF+d}, v166, v167" for d in range(20)]
        for k, nt in enumerate((1, 2, 3, 0)):
            for mt in range(5):
                c = accr(nt * 5 + mt)
                A(f"v_mfma_f32_16x16x32_bf16 {c}, {wreg(i,4*mt,4)}, {hreg(i,4*nt,4)}, {c}")
                if k: A(f"ds_write_b128 v140, {accr(k*5+mt)} offset:{k*5120+mt*1024}")
                for x in F[:2 if k else 3]: A(x)
                F = F[2 if k else 3:]
        assert not F
    YP, SP = C.get("yp", 10), C.get("sp", 8)
    def step(i, role, wq, hq):
        A.vmwait(f"h{i}")
        if i == 0: C["stamp"](A, 6)
        if i >= NR: A("s_waitcnt lgkmcnt(0)")
        if i == 14 - role:
            assert not (wq or hq); last(i); A.vmwait_all(); return
        F = []
        if i + 1 >= NR: F += [lambda t=f"w{i+1}": A.vmwait(t)] + rd(i + 1)
        if wq: F += wq.pop(0)[1]
        if hq: assert i > hq[0][0] - 8; F += hq.pop(0)[1]
        if i == C.get("xp", 5): F += xs
        if role == 2 and i == SP: F += [(f"buffer_load_dword v155, v{YA}, s[68:71], s72 offen sc1", "yf")]
        if role == 2 and i == YP:
            def chk():
                Lk = A.newlabel("yok"); A.vmwait("yf"); vm = list(A.vm)
                A("v_cmp_ne_u32 vcc, s100, v155"); A("s_and_b64 vcc, vcc, s[76:77]"); A(f"s_cbranch_vccz {Lk}")
                poll(A, 68, "s72", 155, YA, "s[76:77]", 73); A.label(Lk); A.vm = vm
            F += [chk] + misc
        M = []
        for nt in range(4):
            for mt in range(5):
                c = accr(nt * 5 + mt)
                M.append([f"v_mfma_f32_16x16x32_bf16 {c}, {wreg(i,4*mt,4)}, {hreg(i,4*nt,4)}, {c if i else 0}"])
        rate = max(1.0, len(F) / 19)
        if rate > 1:
            F = [(lambda y=x: (A("s_nop 0"), emit(A, y))) if isinstance(x, tuple) and x[0].endswith(" lds") else x for x in F]
        rest = interleave(A, M, F, rate=rate)
        for x in rest: emit(A, x)
    assert NH <= 8 and YP < 12 and SP < YP
    for i in range(SP): step(i, 0, wq, hq)
    A("s_cmp_lt_u32 s3, 2"); A("s_cbranch_scc1 f_with13"); vm = list(A.vm)
    w2, h2 = [x for x in wq if x[0] < 13], [x for x in hq if x[0] < 13]
    for i in range(SP, 13): step(i, 2, w2, h2)
    A("s_branch f_no13"); A.label("f_with13"); A.vm = vm
    for i in range(SP, 14): step(i, 1, wq, hq)
    A.label("f_no13")
    C["stamp"](A, 7)
    A("s_waitcnt lgkmcnt(0)")
    A("s_barrier")
    for n in range(1, 4):
        for mt in range(5):
            A(f"ds_read_b128 {vr(ACC+4*(n*5+mt),4)}, v{144+n} offset:{n*5120+mt*1024}")
    Y = 88
    for mt in range(5):
        A(f"ds_read_b64_tr_b16 {vr(Y+2*mt,2)}, v{138 if mt == 4 else 153 if mt & 1 else 139} offset:{(mt>>1)*4096+(mt&1)*512}")
    A("s_lshl_b32 s73, s3, 7"); A("s_add_u32 s72, s72, s73"); A("s_cmp_eq_u32 s3, 1"); A("s_cselect_b32 s72, s99, s72")
    A("s_cmp_eq_u32 s3, 3"); A("s_cselect_b32 s72, 0x40000000, s72")
    A("v_mov_b32 v155, s101")
    A("buffer_store_dword v155, v154, s[68:71], s72 offen sc1")
    A("s_waitcnt lgkmcnt(15)")
    for i in range(0, 20, 2): A(f"v_pk_add_f32 {vr(ACC+i,2)}, {vr(ACC+i,2)}, {vr(ACC+20+i,2)}")
    A("s_waitcnt lgkmcnt(5)")
    for i in range(0, 20, 2): A(f"v_pk_add_f32 {vr(ACC+40+i,2)}, {vr(ACC+40+i,2)}, {vr(ACC+60+i,2)}")
    for i in range(0, 20, 2): A(f"v_pk_add_f32 {vr(ACC+i,2)}, {vr(ACC+i,2)}, {vr(ACC+40+i,2)}")
    E, YF = ACC + 20, ACC + 40
    for i in range(20): A(f"v_mul_f32 v{E+i}, 0xbfb8aa3b, v{ACC+i}")
    for i in range(20): A(f"v_exp_f32 v{E+i}, v{E+i}")
    A("s_waitcnt lgkmcnt(0)")
    for i in range(10):
        A(f"v_lshlrev_b32 v{YF+2*i}, 16, v{Y+i}"); A(f"v_and_b32 v{YF+2*i+1}, s66, v{Y+i}")
    for i in range(0, 20, 2): A(f"v_pk_add_f32 {vr(E+i,2)}, {vr(E+i,2)}, 1.0 op_sel_hi:[1,0]")
    for i in range(0, 20, 2): A(f"v_pk_mul_f32 {vr(YF+i,2)}, {vr(YF+i,2)}, {vr(XN+i,2)}")
    for lo, hi, stq in ((0, 8, "dwordx4 v[156:159], v143, s[52:55], s63 offen"), (8, 16, "dwordx4 v[160:163], v143, s[52:55], s63 offen offset:64"), (16, 20, "dwordx2 v[164:165], v144, s[52:55], s63 offen offset:128")):
        for i in range(lo, hi): A(f"v_rcp_f32 v{E+i}, v{E+i}")
        for i in range(lo, hi, 2): A(f"v_pk_mul_f32 {vr(ACC+i,2)}, {vr(ACC+i,2)}, {vr(YF+i,2)}")
        for i in range(lo, hi, 2): A(f"v_pk_fma_f32 {vr(ACC+i,2)}, {vr(ACC+i,2)}, {vr(E+i,2)}, {vr(XF+i,2)}")
        for i in range(lo, hi, 2): A(f"v_cvt_pk_bf16_f32 v{156+i//2}, v{ACC+i}, v{ACC+i+1}")
        A.vmop("buffer_store_" + stq, "o")
def gtouch(A, S, wd=1):
    A(f"s_lshl_b32 s{S+4}, s2, 2"); A(f"s_add_u32 s{S+4}, s{S+4}, s3")
    A(f"s_mov_b32 s{S}, s{P_WG}"); A(f"s_mov_b32 s{S+1}, s{P_WG+1}"); A(f"s_mov_b32 s{S+5}, s{S+4}")
    for n, P in ((270, P_WU), (540, P_WD))[:1 + wd]:
        A(f"s_sub_u32 s{S+6}, s{S+4}, {n}"); A(f"s_cmp_ge_u32 s{S+4}, {n}")
        A(f"s_cselect_b32 s{S}, s{P}, s{S}"); A(f"s_cselect_b32 s{S+1}, s{P+1}, s{S+1}"); A(f"s_cselect_b32 s{S+5}, s{S+6}, s{S+5}")
    A(f"s_mov_b32 s{S+2}, 2211840"); A(f"s_mov_b32 s{S+3}, 0x20000"); A(f"s_lshl_b32 s{S+5}, s{S+5}, 13")
    A("v_lshlrev_b32 v252, 7, v0")
    A.vmop(f"buffer_load_dword v251, v252, s[{S}:{S+3}], s{S+5} offen", "t")
def ltouch(A, C):
    S = 32; Cn = C.get("g1c", 6); R = 24 // Cn; lp = {12: 0, 6: 1, 3: 2}[Cn]
    A("s_and_b32 s94, s2, 7"); A("s_lshr_b32 s95, s2, 3"); A("s_lshl_b32 s95, s95, 2"); A("s_add_u32 s95, s95, s3")
    A("v_min_u32 v252, 39, v0"); A("v_lshlrev_b32 v252, 7, v252")
    if C["lt"] & 1:
        A("s_bitcmp1_b32 s3, 0"); A(f"s_cselect_b32 s{S}, s{P_V}, s{P_K}"); A(f"s_cselect_b32 s{S+1}, s{P_V+1}, s{P_K+1}")
        A(f"s_mov_b32 s{S+2}, {NB}"); A(f"s_mov_b32 s{S+3}, 0x20000")
        A("s_mul_i32 s96, s94, 327680"); A("s_lshr_b32 s97, s95, 1"); A("s_mul_i32 s97, s97, 5120"); A("s_add_u32 s96, s96, s97")
        A(f"buffer_load_dword v251, v252, s[{S}:{S+3}], s96 offen")
    if C["lt"] & 2:
        A.srd(S + 4, P_Q, NB)
        A(f"s_lshr_b32 s96, s94, {lp}"); A(f"s_mul_i32 s96, s96, {R*163840}"); A(f"s_mul_i32 s97, s95, {R*1280}"); A("s_add_u32 s96, s96, s97")
        for i in range(max(1, R // 4)):
            A(f"buffer_load_dword v251, v252, s[{S+4}:{S+7}], s96 offen")
            if i + 1 < R // 4: A("s_add_u32 s96, s96, 5120")
    if C["lt"] & 4:
        A.srd(S + 8, P_SK, NB); A("v_min_u32 v252, 19, v0"); A("v_lshlrev_b32 v252, 7, v252")
        A("s_mul_i32 s96, s94, 327680"); A("s_mul_i32 s97, s95, 2560"); A("s_add_u32 s96, s96, s97")
        A(f"buffer_load_dword v251, v252, s[{S+8}:{S+11}], s96 offen")
    if C["lt"] & 8:
        gtouch(A, S + 12); A.vm = []
def td2_setup(A, S):
    A.srd(S, P_WD, 2211840); A(f"s_lshr_b32 s{S+4}, s2, 3"); A(f"s_lshl_b32 s{S+4}, s{S+4}, 2"); A(f"s_add_u32 s{S+4}, s{S+4}, s3"); A(f"s_mul_i32 s{S+4}, s{S+4}, 17280")
    A("v_min_u32 v253, 44, v0"); A("v_lshlrev_b32 v253, 7, v253")
    L = []
    for i in range(3): L.append([(f"buffer_load_dword v251, v253, s[{S}:{S+3}], s{S+4} offen", "t"), f"s_add_u32 s{S+4}, s{S+4}, 5760"])
    return L
def codepf(A, K):
    A("s_getpc_b64 s[88:89]"); A.label("f_pc")
    A(f"s_mov_b32 s90, {K}_end-f_pc"); A("s_mov_b32 s91, 0x20000")
    A("s_lshr_b32 s92, s2, 3"); A("s_lshl_b32 s92, s92, 2"); A("s_add_u32 s92, s92, s3"); A("s_lshl_b32 s92, s92, 9")
    A("v_min_u32 v252, 3, v0"); A("v_lshlrev_b32 v252, 7, v252")
    A("buffer_load_dword v251, v252, s[88:91], s92 offen")
def build(A, C, head, tail, map1, map2, NAME):
    C.setdefault("st", " sc1"); C.setdefault("ld", "")
    K = NAME + "_kernel"
    if C.get("pf", 0): C["pre"] = lambda A: codepf(A, K)
    head(A, K, 256, C); p_kv.epoch_load(A)
    if C.get("lt", 0): ltouch(A, C)
    map1(A, C, "f_conv")
    A("s_mul_i32 s98, s30, 48"); A("s_lshl_b32 s97, s31, 2"); A("s_add_u32 s98, s98, s97"); A("s_add_u32 s98, s98, s3")
    A("s_mov_b32 s99, 0x40000000")
    KA = C.get("kvall", 1)
    if not KA: C["kvgen"] = p_kv.kvtask(A, C, 1, 98, 84, 64)
    def early(A):
        early2(A, C, 84, map2, 62)
        rdf, chk, L = wpre(A, C, 84, 62)
        W0 = C.get("wchk", 252); C["g1fill"] = {W0 - C.get("wfm", 47): rdf, W0: [chk]}
        for n, x in enumerate(L):
            m = W0 + 1 + n * C.get("wsp", 2); assert m < 360 and (n < 30 or m > 252) and (n < 40 or m > 301)
            C["g1fill"][m] = x
        if KA: A("s_waitcnt lgkmcnt(0)"); p_kv.epoch_fin(A)
        A("s_lshr_b32 s95, s48, 1"); A("s_lshl_b32 s95, s95, 12"); A("s_lshl_b32 s96, s31, 3"); A("s_add_u32 s95, s95, s96")
        A("s_and_b32 s96, s3, 1"); A("s_lshl_b32 s96, s96, 2"); A("s_add_u32 s95, s95, s96")
        flagaddr(A, 8, 9, 95)
    C["early"] = early; C["endbar"] = 1
    if C.get("gt", 0): C["afterkv"] = lambda A: gtouch(A, 72, C.get('gtw', 1))
    p_g1.g1(A, C); trans(A, C, map2, "h", 62); vm = list(A.vm)
    A("s_branch f_join"); A.vm = []
    A.label("f_conv")
    A("s_lshl_b32 s52, s30, 3"); A("s_lshl_b32 s53, s3, 1"); A("s_add_u32 s52, s52, s53"); A("s_add_u32 s52, s52, 768")
    A("s_lshl_b32 s99, s30, 8"); A(f"s_add_u32 s99, s99, {WS_KMB-WS_MB}")
    if KA:
        A("s_mul_i32 s52, s30, 20"); A("s_add_u32 s94, s52, 16"); A("s_add_u32 s94, s94, s3"); A("s_lshl_b32 s53, s3, 2"); A("s_add_u32 s52, s52, s53")
        kv = p_kv.kvtask(A, C, 4, 52, 8, 32, 124, 186); next(kv)
        kv2 = p_kv.kvtask(A, C, 1, 94, 100, 32, 124, 190, False, "b"); next(kv2)
    else:
        kv = p_kv.kvtask(A, C, 2, 52, 8, 32); next(kv)
    p_conv.conv_early(A, C)
    C["stamp"](A, 11)
    next(kv)
    if KA: next(kv2)
    if C.get("klate") == 1:
        for n in range(2):
            for x in p_conv.kdma(A, n, n): emit(A, x)
    p_conv.conv_pads(A, C); wsrc(A)
    A("s_lshr_b32 s52, s30, 3"); A("s_lshl_b32 s52, s52, 9"); A("s_and_b32 s53, s30, 7"); A("s_lshl_b32 s53, s53, 4"); A("s_add_u32 s52, s52, s53")
    A("s_lshl_b32 s53, s3, 2"); A("s_add_u32 s52, s52, s53"); A("s_add_u32 s52, s52, 128")
    flagaddr(A, 32, 12, 52)
    next(kv)
    if KA: next(kv2)
    if C.get("klate") == 2:
        for n in range(2):
            for x in p_conv.kdma(A, n, n): emit(A, x)
    if C.get("gt", 0): gtouch(A, 40, C.get('gtw', 1))
    C["stamp"](A, 1)
    A("s_mul_i32 s52, s30, 10"); A("s_add_u32 s53, s52, 9"); A("s_xor_b32 s52, s52, s53"); A("s_lshr_b32 s52, s52, 4")
    A("s_cmp_lg_u32 s52, 0"); A("s_cselect_b32 s55, -1, 0"); A("s_mov_b32 s54, -1")
    A("s_lshl_b32 s52, s30, 8")
    A.srd(48, P_WD, 2211840)
    early2(A, C, 36, map2, 44)
    p_conv.conv_addr(A, C)
    A("s_and_b32 s46, s30, 7"); A("s_lshl_b32 s46, s46, 2"); A("s_add_u32 s46, s46, s3")
    A("s_lshr_b32 s47, s30, 3"); A("s_mul_i32 s84, s47, 160"); A("s_mul_i32 s95, s46, 40960"); A("s_add_u32 s84, s84, s95"); A("s_add_u32 s85, s84, 1310720")
    A(f"s_add_u32 s86, s76, {p_conv.UBUF}"); A("s_mul_i32 s87, s3, 5120"); A("s_add_u32 s87, s87, 141312")
    A("v_add_u32 v242, s86, v241"); A("v_add_u32 v243, s87, v241"); A("v_add_u32 v246, s86, v248"); A("v_add_u32 v247, s87, v248")
    A("s_mul_i32 s47, s47, 54"); A("s_add_u32 s47, s47, s46"); A("s_mul_i32 s47, s47, 5120")
    A("s_cmp_lt_u32 s46, 22"); A("s_cselect_b32 s46, 163840, 0x40000000"); A("s_add_u32 s46, s46, s47")
    wsd = [sum([[f"s_add_u32 m0, s{86+n}, {q*1024}", "s_nop 0", (f"buffer_load_dwordx4 v{236+q}, s[48:51], s{84+n} offen lds", f"ws{n}")] for q in range(5)], []) for n in range(2)]
    trd = [[lambda n=n: A.vmwait(f"ws{n}")] + [f"ds_read_b64_tr_b16 {vr(72+20*n+4*mt+2*u,2)}, v{(242 if mt < 4 else 246)+n} offset:{64*(mt>>1)+8*(mt&1)+1280*u}" for mt in range(5) for u in range(2)] for n in range(2)]
    wst = [[(f"buffer_store_dwordx4 {vr(72+20*n+4*mt,4)}, v{WA+(mt>>2)}, s[36:39], s{47-n} offen offset:{(mt&3)*1024}{C['st']}", "wst") for mt in range(5)] for n in range(2)]
    rdf, chk, L = wpre(A, C, 36, 44)
    U1 = p_conv.udma(A, C, 1, 1); K2 = p_conv.kdma(A, 2, 0); U2 = p_conv.udma(A, C, 2, 0); R = C.get("rtr", 2); CF = {}
    def add(r, x): CF.setdefault(divmod(r, 8), []).extend(x)
    add(0, wsd[0]); add(1, wsd[1]); add(R, trd[0]); add(R + 1, wst[0] + U1[:10]); add(R + 2, U1[10:] + p_conv.upads(1))
    R = C.get("rt2", R + 1); add(R, trd[1]); add(R + 1, wst[1])
    add(R + 3, ["v_mov_b32 v250, s100", lambda: A.vmwait("wst"), ("buffer_store_dword v250, v249, s[40:43], 0 offen offset:128 sc1", "fl")])
    k = C.get("k2", 7); add(k, K2[:6]); add(k + 1, K2[6:] + p_conv.kpatch(2, 0)); add(k + 2, U2[:10]); add(k + 3, U2[10:])
    c0, c1 = C.get("c0", 11), C.get("c1", 19); add(c0 - 2, rdf); add(c0, [chk])
    for r in range(c0, c1): add(r, sum(L[50*(r-c0)//(c1-c0):50*(r+1-c0)//(c1-c0)], []))
    C["cfill"] = CF
    vk = list(A.vm); A("s_cmp_lg_u32 s3, 3"); A("s_cbranch_scc1 f_kok")
    poll(A, 32, "s52", 2, 254, "s[54:55]", 53); A.label("f_kok"); A("s_barrier"); A.vm = vk
    C["stamp"](A, 2)
    p_conv.conv_main(A, C)
    C["stamp"](A, 5)
    A("s_barrier")
    trans(A, C, map2, "yst", 44)
    assert A.vm == vm, (A.vm, vm)
    A.label("f_join")
    g2(A, C)
    tail(A, K, C, 0, 512, 256)
    return "; @launch grid=(256,1,1) block=(256,1,1) lds=163840\n"
```

```python
from base import *
KBUF, UBUF = 8448, 9216
KE, KO = 0, 4224
U1, U0 = 0, 4576
UBASE = 8 * KBUF
PREP = UBASE
def kvprep(A, C):
    st = C["st"]
    A.srd(32, P_K, NB); A.srd(36, P_V, NB); A.srd(40, P_SH, 5120); A.srd(44, P_WS, NB)
    A("s_lshr_b32 s48, s30, 1")
    A("s_and_b32 s49, s30, 1")
    A("s_mul_i32 s50, s48, 81920")
    A("s_mul_i32 s51, s49, 640")
    A("s_add_u32 s50, s50, s51")
    A("s_mul_i32 s51, s49, 2560")
    A("s_movk_i32 s52, 5120")
    D = 16
    for it in range(5):
        b = D + it * 24
        A(f"v_add_u32 v2, {it*256}, v1")
        A("v_mul_u32_u24 v3, 52429, v2")
        A("v_lshrrev_b32 v3, 23, v3")
        A("v_mul_u32_u24 v4, 160, v3")
        A("v_sub_u32 v4, v2, v4")
        A("v_mul_u32_u24 v5, 10240, v3")
        A("v_lshl_add_u32 v5, v4, 2, v5")
        A("v_add_u32 v5, s50, v5")
        A("v_subrev_u32 v6, 3840, v5")
        A("v_lshlrev_b32 v7, 4, v4")
        A.vmop(f"buffer_load_dwordx4 {vr(b+20,4)}, v7, s[40:43], s51 offen", f"t{it}")
        for i in range(3):
            A.vmop(f"buffer_load_dword v{b+i}, v6, s[32:35], 0 offen offset:{i*1280}", f"t{it}")
        for i in range(8):
            so = "0" if i < 4 else "s52"
            A.vmop(f"buffer_load_dword v{b+3+i}, v5, s[32:35], {so} offen offset:{(i%4)*1280}", f"t{it}")
            A.vmop(f"buffer_load_dword v{b+11+i}, v5, s[36:39], {so} offen offset:{(i%4)*1280}", f"t{it}")
        A("v_mul_u32_u24 v7, 272, v4")
        A("v_sub_u32 v3, 7, v3")
        A(f"v_lshl_add_u32 v{8+it}, v3, 4, v7")
        if it == 2: yield "mid"
    yield "issued"
    T = 136
    Kp, Wp, Vp, O, PK = T, T + 22, T + 30, T + 32, T + 48
    A("s_mov_b32 s53, 0xffff0000")
    for it in range(5):
        b = D + it * 24
        A.vmwait(f"t{it}")
        for j in range(4):
            for ch in range(2):
                src = b + 20 + ch * 2 + (j >> 1)
                A(f"v_and_b32 v{Wp+2*j+ch}, s53, v{src}" if j & 1 else f"v_lshlrev_b32 v{Wp+2*j+ch}, 16, v{src}")
        for i in range(11):
            A(f"v_lshlrev_b32 v{Kp+2*i}, 16, v{b+i}")
            A(f"v_and_b32 v{Kp+2*i+1}, s53, v{b+i}")
        for r in range(8):
            A(f"v_pk_mul_f32 {vr(O+2*r,2)}, {vr(Wp+6,2)}, {vr(Kp+2*r,2)}")
        for j in (2, 1, 0):
            for r in range(8):
                A(f"v_pk_fma_f32 {vr(O+2*r,2)}, {vr(Wp+2*j,2)}, {vr(Kp+2*(r+3-j),2)}, {vr(O+2*r,2)}")
        for r in range(8):
            A(f"v_lshlrev_b32 v{Kp+2*r}, 16, v{b+11+r}")
            A(f"v_and_b32 v{Kp+2*r+1}, s53, v{b+11+r}")
        for r in range(8):
            A(f"v_pk_mul_f32 {vr(O+2*r,2)}, {vr(O+2*r,2)}, {vr(Kp+2*r,2)}")
        pk = PK + (it & 1) * 8
        for ch in range(2):
            for q in range(4):
                A(f"v_cvt_pk_bf16_f32 v{pk+4*ch+q}, v{O+2*(7-2*q)+ch}, v{O+2*(6-2*q)+ch}")
        A(f"ds_write_b128 v{8+it}, {vr(pk,4)} offset:{PREP-65536+0}" if False else f"v_add_u32 v7, {PREP}, v{8+it}")
        A(f"ds_write_b128 v7, {vr(pk,4)}")
        A(f"ds_write_b128 v7, {vr(pk+4,4)} offset:128")
    A("v_lshrrev_b32 v2, 4, v1")
    A("v_mul_u32_u24 v2, 272, v2")
    A("v_and_b32 v3, 15, v1")
    A("v_lshl_add_u32 v2, v3, 4, v2")
    A(f"v_add_u32 v2, {PREP}, v2")
    A("v_lshrrev_b32 v4, 3, v1")
    A("v_lshlrev_b32 v4, 12, v4")
    A("v_and_b32 v3, 7, v1")
    A("v_lshl_add_u32 v4, v3, 4, v4")
    A("s_sub_u32 s50, 31, s48")
    A("s_lshl_b32 s50, s50, 7")
    A("s_mul_i32 s51, s49, 1310720")
    A("s_add_u32 s50, s50, s51")
    A("s_waitcnt lgkmcnt(0)")
    A("s_barrier")
    for i in range(10):
        A(f"ds_read_b128 {vr(D+4*i,4)}, v2 offset:{i*16*272}")
    for i in range(10):
        A(f"s_waitcnt lgkmcnt({9-i})")
        A.vmop(f"buffer_store_dwordx4 {vr(D+4*i,4)}, v4, s[44:47], s50 offen{st}", "kvst")
        if i < 9: A("s_add_u32 s50, s50, 131072")
    yield "done"

def conv_early(A, C):
    A.srd(56, P_SK, NB)
    A("s_mul_i32 s60, s30, 10")
    A("s_lshl_b32 s61, s3, 1")
    A("s_add_u32 s61, s60, s61")
    A("s_lshr_b32 s62, s3, 1")
    A("s_add_u32 s62, s62, s60")
    A("s_add_u32 s62, s62, 8")
    A("s_lshl_b32 s63, s61, 12")
    A("s_add_u32 s64, s63, 4096")
    A("s_lshl_b32 s65, s62, 12")
    for n in range(3):
        A(f"s_load_dwordx2 s[{66+2*n}:{67+2*n}], s[{P_SK}:{P_SK+1}], s{63+n}")
    A("s_lshl_b32 s72, s61, 1")
    A(f"s_load_dword s73, s[{P_SD}:{P_SD+1}], s72")
    A("s_lshl_b32 s72, s62, 1")
    A("s_and_b32 s72, s72, 0xfffffffc")
    A(f"s_load_dword s74, s[{P_SD}:{P_SD+1}], s72")
    A(f"s_mul_i32 s75, s3, {2*KBUF}")
    A(f"s_mul_i32 s76, s3, {2*UBUF}")
    A(f"s_add_u32 s76, s76, {UBASE}")
    A("v_lshlrev_b32 v232, 4, v0")
    for n in range(0 if C.get("klate") else 2):
        for x in kdma(A, n, n): emit(A, x)

def kdma(A, n, buf):
    L = []
    L.append(f"s_add_u32 m0, s75, {buf*KBUF+KE+64}")
    L.append(f"s_add_u32 s77, s{63+n}, 6")
    for i in range(4):
        L.append((f"buffer_load_dwordx4 v232, s[56:59], s{63+n} offen offset:{i*1024} lds", f"k{n}"))
    L.append(f"s_add_u32 m0, s75, {buf*KBUF+KO+64}")
    L.append("s_nop 0")
    for i in range(4):
        L.append((f"buffer_load_dwordx4 v232, s[56:59], s77 offen offset:{i*1024} lds", f"k{n}"))
    return L
def kpatch(n, buf):
    return [f"s_lshl_b32 s78, s{66+2*n}, 16", f"s_lshr_b32 s79, s{66+2*n}, 16", f"s_lshl_b32 s72, s{67+2*n}, 16",
            "s_or_b32 s79, s79, s72", "v_mov_b32 v234, s78", "v_mov_b32 v235, s79", "v_mov_b32 v215, s75",
            f"ds_write_b64 v215, v[234:235] offset:{buf*KBUF+KO+56}"]
def udma(A, C, n, buf):
    ld = C["ld"]
    L = [f"s_add_u32 s80, s{P_WS}, s{63+n}", f"s_addc_u32 s81, s{P_WS+1}, 0", "s_movk_i32 s82, 4096", "s_mov_b32 s83, 0x20000",
         f"s_add_u32 m0, s76, {buf*UBUF+U1}", "s_nop 0"]
    for i in range(4):
        L.append((f"buffer_load_dwordx4 v232, s[80:83], 0 offen offset:{i*1024} {ld} lds", f"u{n}"))
    L += [f"s_add_u32 m0, s76, {buf*UBUF+U0}", "s_nop 0"]
    for i in range(4):
        L.append((f"buffer_load_dwordx4 v232, s[80:83], 4 offen offset:{i*1024} {ld} lds", f"u{n}"))
    return L

def conv_pads(A, C):
    A("s_waitcnt lgkmcnt(0)")
    for r in range(4): A(f"v_mov_b32 v{208+r}, 0")
    A("v_and_b32 v233, 3, v0")
    A("v_lshlrev_b32 v233, 4, v233")
    A("v_add_u32 v233, s75, v233")
    for buf in range(2):
        A(f"ds_write_b128 v233, v[208:211] offset:{buf*KBUF+KE}")
        A(f"ds_write_b128 v233, v[208:211] offset:{buf*KBUF+KO}")
    for n in range(2):
        for x in kpatch(n, n): A(x)

def upads(buf):
    return [f"ds_write_b128 v233, v[208:211] offset:{buf*UBUF+U1+4096}", f"ds_write_b128 v233, v[208:211] offset:{buf*UBUF+U0+4096}"]
def conv_addr(A, C):
    A("v_min_u32 v233, 27, v0")
    A("v_lshlrev_b32 v233, 4, v233")
    A("v_add_u32 v233, s76, v233")
    A("v_and_b32 v2, 1, v0")
    A("v_bfe_u32 v3, v0, 1, 3")
    A("v_lshrrev_b32 v4, 4, v0")
    A(f"v_mul_u32_u24 v5, {KO-KE-8}, v2")
    A(f"v_sub_u32 v5, {KO}, v5")
    A("v_lshl_add_u32 v5, v3, 3, v5")
    A("v_lshl_add_u32 v5, v4, 4, v5")
    A("v_add_u32 v212, s75, v5")
    A(f"v_mul_u32_u24 v5, {U0-U1}, v2")
    A(f"v_sub_u32 v5, {U0+448}, v5")
    A("v_lshlrev_b32 v6, 6, v3")
    A("v_sub_u32 v5, v5, v6")
    A("v_lshl_add_u32 v5, v4, 4, v5")
    A("v_add_u32 v213, s76, v5")
    A("v_lshlrev_b32 v5, 6, v3")
    A("v_lshl_add_u32 v5, v4, 4, v5")
    A("v_lshl_add_u32 v214, v2, 3, v5")
    A("v_lshl_add_u32 v5, v3, 2, v2")
    A("v_lshl_add_u32 v5, v4, 3, v5")
    A("v_sub_u32 v5, 29, v5")
    A("v_mov_b32 v6, 0xffff")
    A("v_mov_b32 v7, 0xffff0000")
    for d in range(4):
        A(f"v_cmp_eq_u32 vcc, {2*d}, v5")
        A(f"v_cmp_eq_u32 s[84:85], {2*d+1}, v5")
        A("s_nop 1")
        A(f"v_cndmask_b32 v{216+d}, 0, v6, vcc")
        A(f"v_cndmask_b32 v{216+d}, v{216+d}, v7, s[84:85]")
    A.srd(88, P_WS, NB, WS_YT)
def conv_main(A, C):
    st = C["st"]
    for x in udma(A, C, 0, 0) + upads(0): emit(A, x)
    FA, FB, ACC, AD, PK = [0, 64], [32, 96], [8, 40], 220, 224
    def reads(buf, r, s, tiles):
        L = []
        mx = max(tiles)
        for q in range(mx + 1):
            e = 8 * q + r
            L.append(f"ds_read_b128 {ar(FB[s]+4*q,4)}, v213 offset:{buf*UBUF+64*(56-(8*q-r))}")
            L.append(f"ds_read_b64 {ar(FA[s]+4*q,2)}, v212 offset:{buf*KBUF+64*e}")
            L.append(f"ds_read_b64 {ar(FA[s]+4*q+2,2)}, v212 offset:{buf*KBUF+64*e+8}")
        return L
    def dfrag(sreg, hi):
        L = [f"s_lshr_b32 s72, s{sreg}, 16" if hi else f"s_and_b32 s72, s{sreg}, 0xffff", "s_mul_i32 s72, s72, 0x10001"]
        return L + [f"v_and_b32 v{AD+d}, s72, v{216+d}" for d in range(4)]
    def epi(n, a, tiles):
        L = []
        for k, c in enumerate(tiles):
            p = PK + 2 * (k % 4)
            L.append(f"v_cvt_pk_bf16_f32 v{p}, v{ACC[a]+4*c}, v{ACC[a]+4*c+1}")
            L.append(f"v_cvt_pk_bf16_f32 v{p+1}, v{ACC[a]+4*c+2}, v{ACC[a]+4*c+3}")
            L.append((f"buffer_store_dwordx2 {vr(p,2)}, v214, s[88:91], s{63+n} offen offset:{c*512}{st}", "yst"))
        return L
    def channel(n, buf, a, tiles, pre, nxt, last):
        for r in range(8):
            s = r & 1
            A("s_waitcnt lgkmcnt(0)")
            M = []
            if r == 0:
                for c in tiles:
                    M.append([f"v_mfma_f32_16x16x32_bf16 {vr(ACC[a]+4*c,4)}, {vr(AD,4)}, {ar(FB[s]+4*c,4)}, 0"])
            for q in range(8):
                for c in tiles:
                    if c >= q:
                        M.append([f"v_mfma_f32_16x16x32_bf16 {vr(ACC[a]+4*c,4)}, {ar(FA[s]+4*q,4)}, {ar(FB[s]+4*(c-q),4)}, {vr(ACC[a]+4*c,4)}"])
            F = []
            if r < 7: F += reads(buf, r + 1, s ^ 1, tiles)
            if r == 1: F += pre
            F += C.get("cfill", {}).get((n, r), [])
            if r == 7 and nxt:
                F = [lambda t=nxt[2]: A.vmwait(t)] + reads(nxt[0], 0, s ^ 1, nxt[1]) + last + F
            rest = interleave(A, M, F, rate=max(1.0, len(F) / max(1, len(M) - 6)))
            for x in rest: emit(A, x)
    full = list(range(8))
    for x in dfrag(73, 0): A(x)
    C["stamp"](A, 11)
    A.vmwait("u0")
    C["stamp"](A, 3)
    for x in reads(0, 0, 0, full): A(x)
    channel(0, 0, 0, full, C.get('pre0', []), (1, full, "u1"), dfrag(73, 1))
    C["stamp"](A, 4)
    A("s_lshr_b32 s72, s3, 1")
    A("s_lshl_b32 s72, s72, 4")
    A("s_lshr_b32 s74, s74, s72")
    channel(1, 1, 1, full, epi(0, 0, full) + C.get('pre1', []), (0, full, "u2"), dfrag(74, 0))
    C["stamp"](A, 12)
    La, Lb = A.newlabel("cvh"), A.newlabel("cve")
    A("s_bitcmp1_b32 s3, 0")
    A(f"s_cbranch_scc1 {La}")
    vm0 = list(A.vm)
    for hf, tiles in enumerate(([0, 3, 4, 7], [1, 2, 5, 6])):
        A.vm = list(vm0)
        channel(2, 0, 0, tiles, epi(1, 1, full), None, [])
        A("s_nop 7")
        for x in epi(2, 0, tiles): emit(A, x)
        if hf == 0:
            A(f"s_branch {Lb}"); A.label(La)
    A.label(Lb)
```

```python
from base import *
import p_conv, p_g1, p_kv
from p_kv import WS_MB, WS_KMB, WS_WT, poll
WREG = 40960
WA = 244
YB = 2 * WREG + 35840
WP = 132
NR = 10
def wreg(i, o, n):
    return ar(WP + 20 * i + o, n) if i < 6 else vr(168 + 20 * (i - 8) + o, n) if i in (8, 9) else vr(80 + 20 * (i & 1) + o, n)
def accr(t): return vr(8 + 4 * t if t < 18 else 120 + 4 * (t - 18), 4)
def wsrc(A):
    for i in range(5):
        A(f"v_add_u32 v2, {64*i}, v0")
        A("v_mul_u32_u24 v3, 6554, v2"); A("v_lshrrev_b32 v3, 16, v3")
        A("v_mul_u32_u24 v4, 10, v3"); A("v_sub_u32 v4, v2, v4")
        A("v_and_b32 v5, 19, v3"); A("v_bfe_u32 v6, v3, 2, 1"); A("v_lshl_add_u32 v5, v6, 3, v5"); A("v_bfe_u32 v6, v3, 3, 1"); A("v_lshl_add_u32 v5, v6, 2, v5")
        A("v_mul_u32_u24 v5, 1280, v5"); A(f"v_lshl_add_u32 v{236+i}, v4, 4, v5")
    A("v_lshrrev_b32 v2, 4, v0"); A("v_bfe_u32 v3, v0, 2, 2"); A("v_and_b32 v4, 3, v0")
    A("v_lshrrev_b32 v5, 1, v2"); A("v_lshl_add_u32 v5, v5, 4, v3"); A("v_and_b32 v6, 1, v2"); A("v_lshl_add_u32 v5, v6, 2, v5")
    A("v_mul_u32_u24 v5, 160, v5"); A("v_lshl_add_u32 v241, v4, 4, v5"); A("v_lshl_add_u32 v248, v4, 3, v5")
def early2(A, C, S, map2, O):
    A(f"v_lshlrev_b32 v{WA}, 4, v0"); A(f"v_add_u32 v{WA+1}, 4096, v{WA}"); A("v_lshlrev_b32 v254, 2, v0")
    A.srd(S, P_WS, 2211840, WS_WT); A.srd(S + 4, P_WS, 0x44000, WS_MB)
    map2(A, C, O + 1, O)
    A(f"s_lshl_b32 s{O+1}, s{O+1}, 3"); A(f"s_add_u32 s{O+1}, s{O+1}, s{O}"); A(f"s_lshl_b32 s{O+1}, s{O+1}, 10")
    A(f"s_mul_i32 s{O}, s{O}, 276480"); A("s_mul_i32 s94, s3, 5120"); A(f"s_add_u32 s{O}, s{O}, s94")
def wrap(r, n, b):
    return [f"s_add_u32 s{r}, s{r}, {n}", f"s_cmp_eq_u32 s{r}, s{b+1}", f"s_cselect_b32 s{r}, s{b}, s{r}"]
def wpre(A, C, S, O, B):
    rdf = [(f"buffer_load_dword v251, v254, s[{S+4}:{S+7}], s{O+1} offen offset:256 sc1", "wf")]
    def chk():
        Lk = A.newlabel("wok"); A.vmwait("wf"); vm = list(A.vm)
        if one: A("s_cmp_lg_u32 s3, 3"); A(f"s_cbranch_scc1 {Lk}")
        A("s_mov_b32 s94, -1"); A("s_mov_b32 s95, 0")
        A("v_cmp_ne_u32 vcc, s100, v251"); A("s_and_b64 vcc, vcc, s[94:95]"); A(f"s_cbranch_vccz {Lk}")
        A(f"s_add_u32 s97, s{O+1}, 256")
        poll(A, S + 4, "s97", 251, 254, "s[94:95]", 96); A.label(Lk); A.vm = vm
        if one: A("s_barrier")
    L = []
    for i in range(NR):
        for q in range(5):
            x = [(f"buffer_load_dwordx4 {wreg(i,4*q,4)}, v{WA+(q>>2)}, s[{S}:{S+3}], s{O} offen offset:{(q&3)*1024}{C['ld']}", "wp")]
            if q == 4: x += wrap(O, 20480, B)
            if i == 0 and q == 0:
                x = [f"s_mov_b32 s{B}, s{O}", f"s_add_u32 s{B+1}, s{O}, 266240", f"s_bfe_u32 s94, s{O+1}, 0x30009", f"s_mul_i32 s94, s94, {C.get('rot', 13)}",
                     "s_lshr_b32 s94, s94, 3", "s_mul_i32 s94, s94, 20480", f"s_add_u32 s{O}, s{O}, s94"] + x
            L.append(x)
    if C.get("wt", 0):
        T = [f"s_bfe_u32 s94, s{O+1}, 0x2000c", f"s_bfe_u32 s95, s{O+1}, 0x30009", "s_lshl_b32 s94, s94, 2", "s_add_u32 s94, s94, s3", "s_mul_i32 s94, s94, 9600",
             "s_mul_i32 s95, s95, 276480", "s_add_u32 s94, s94, s95", "s_add_u32 s94, s94, 122880", "v_lshlrev_b32 v253, 7, v0", "v_min_u32 v252, 10, v0", "v_lshlrev_b32 v252, 7, v252",
             (f"buffer_load_dword v248, v253, s[{S}:{S+3}], s94 offen{C['ld']} ", "t"), "s_add_u32 s94, s94, 8192", (f"buffer_load_dword v248, v252, s[{S}:{S+3}], s94 offen{C['ld']} ", "t")]
        k = C["wt"] - 1; L[k] = L[k] + T
    return rdf, chk, L
def flagaddr(A, nl, sh, sreg):
    A(f"v_lshlrev_b32 v2, {sh}, v0"); A(f"v_add_u32 v2, s{sreg}, v2"); A("v_mov_b32 v3, 0x40000000")
    A(f"v_cmp_gt_u32 vcc, {nl}, v0"); A("s_nop 0"); A("v_cndmask_b32 v249, v3, v2, vcc")
def wd(C, i):
    L = [f"s_add_u32 m0, s58, {(13-i)*5120}", "s_nop 0" if i < 13 else "s_add_u32 s57, s79, s61"]
    for q in range(5):
        if q == 4: L += [f"s_add_u32 m0, s58, {(13-i)*5120+4096}", "s_nop 0"]
        L.append((f"buffer_load_dwordx4 v{WA+(q>>2)}, s[32:35], s57 offen offset:{(q&3)*1024}{C['ld']} lds", f"w{i}"))
    return L + wrap(57, 20480, 78)
def hreg(i, o, n):
    return ar(16 * (i % 8) + o, n)
def hl(C, i):
    L = ["s_add_u32 s67, s81, s61"] if i == 13 else []
    for nt in range(4):
        L.append((f"buffer_load_dwordx4 {hreg(i,4*nt,4)}, v{133+nt}, s[36:39], s67 offen{C['ld']}", f"h{i}"))
    return L + wrap(67, 4096, 80)
def trans(A, C, map2, tag, O, B):
    A(f"s_mov_b32 s57, s{O}"); A(f"s_mov_b32 s72, s{O+1}"); A(f"s_mov_b32 s78, s{B}"); A(f"s_mov_b32 s79, s{B+1}")
    A.srd(32, P_WS, 2211840, WS_WT); A.srd(68, P_WS, 0x44000, WS_MB)
    A(f"s_mul_i32 s58, s3, {WREG}"); A("s_cmp_lt_u32 s3, 2"); A("s_cselect_b32 s61, 0, 0x40000000")
    A("v_mov_b32 v250, s100")
    map2(A, C, 30, 31); A("s_mul_i32 s56, s31, 160")
    D = []
    for i in range(NR, NR + C.get("nw1", 2)):
        w = wd(C, i); D += [w[0:3], w[3:4], w[4:5], w[5:6], w[6:]]
    for x in interleave(A, D, setup2(A, C) if C.get("su", 0) else []): emit(A, x)
    A.vmwait(tag)
    A.vmop("buffer_store_dword v250, v249, s[68:71], 0 offen sc1", "fl")
    C["stamp"](A, 8)
def setup2(A, C):
    L = []; A = L.append
    def srd(d, base, size, off=None):
        t = Asm(); t.srd(d, base, size, off); L.extend(x.strip() for x in t.L)
    srd(36, P_WS, 7077888, WS_H); srd(40, P_WS, NB, WS_YT); srd(44, P_Q, NB); srd(48, P_WS, 16384, WS_ST); srd(52, P_OUT, NB)
    A("v_lshlrev_b32 v8, 4, v0")
    for n in range(4):
        A(f"s_add_u32 s60, s3, {n}"); A("s_and_b32 s60, s60, 3"); A("s_mul_i32 s60, s60, 55296"); A(f"v_add_u32 v{133+n}, s60, v8")
        if n: A(f"s_sub_u32 s60, s3, {n}"); A("s_and_b32 s60, s60, 3"); A(f"s_mul_i32 s60, s60, {WREG}"); A(f"v_add_u32 v{144+n}, s60, v8")
    A("s_mul_i32 s59, s30, 221184"); A("s_lshl_b32 s60, s3, 10"); A("s_add_u32 s80, s59, s60")
    A("s_add_u32 s81, s80, 53248"); A(f"s_mul_i32 s60, s31, {C.get('rot', 13)}"); A("s_lshr_b32 s60, s60, 3"); A("s_lshl_b32 s60, s60, 12"); A("s_add_u32 s67, s80, s60")
    A("v_lshrrev_b32 v2, 4, v0"); A("v_bfe_u32 v3, v0, 2, 2"); A("v_and_b32 v4, 3, v0")
    A("v_lshl_add_u32 v5, v2, 2, v3"); A("v_bfe_u32 v6, v5, 1, 2"); A("v_lshlrev_b32 v6, 1, v6")
    A("v_lshrrev_b32 v7, 1, v4"); A("s_lshl_b32 s60, s3, 1"); A("v_add_u32 v7, s60, v7"); A("v_xor_b32 v7, v7, v6"); A("v_lshlrev_b32 v7, 4, v7")
    A("v_and_b32 v6, 7, v5"); A("v_lshl_add_u32 v7, v6, 7, v7"); A("v_lshrrev_b32 v6, 3, v5"); A("v_lshl_add_u32 v7, v6, 10, v7"); A(f"v_add_u32 v7, {YB}, v7")
    A("v_and_b32 v6, 1, v4"); A("v_lshl_add_u32 v138, v6, 3, v7")
    A("v_lshrrev_b32 v7, 1, v4"); A("v_add_u32 v7, s60, v7"); A("v_and_b32 v5, 2, v3"); A("v_xor_b32 v7, v7, v5"); A("v_lshlrev_b32 v7, 4, v7")
    A("v_lshl_add_u32 v7, v3, 7, v7"); A("v_lshl_add_u32 v7, v6, 3, v7"); A("v_lshlrev_b32 v5, 10, v2"); A(f"v_add_u32 v5, {YB}, v5"); A("v_add_u32 v139, v7, v5")
    A("v_xor_b32 v7, 64, v7"); A("v_add_u32 v153, v7, v5")
    A("v_add_u32 v140, s58, v8")
    A("s_lshl_b32 s62, s30, 6"); A("s_lshl_b32 s60, s3, 4"); A("s_add_u32 s62, s62, s60")
    A("s_mul_i32 s63, s62, 1280"); A("s_add_u32 s63, s63, s56"); A("s_lshl_b32 s62, s62, 3")
    A("v_and_b32 v5, 9, v0"); A("v_bfe_u32 v6, v0, 1, 1"); A("v_lshl_add_u32 v5, v6, 2, v5"); A("v_bfe_u32 v6, v0, 2, 1"); A("v_lshl_add_u32 v5, v6, 1, v5")
    A("v_lshlrev_b32 v149, 3, v5"); A("v_mul_u32_u24 v5, 1280, v5"); A("v_lshl_add_u32 v143, v2, 4, v5"); A("v_lshl_add_u32 v144, v2, 3, v5")
    A("v_lshrrev_b32 v2, 3, v0"); A("v_bfe_u32 v3, v0, 4, 2"); A("v_lshlrev_b32 v3, 1, v3"); A("v_and_b32 v4, 7, v0"); A("v_xor_b32 v4, v4, v3")
    A("v_lshlrev_b32 v4, 4, v4"); A("v_lshl_add_u32 v152, v2, 12, v4")
    A("s_mul_i32 s64, s31, 327680"); A("s_lshl_b32 s60, s30, 7"); A("s_add_u32 s64, s64, s60"); A("s_and_b32 s65, s3, 1"); A("s_mul_i32 s60, s65, 163840"); A("s_add_u32 s64, s64, s60")
    A("s_mul_i32 s65, s65, 5120"); A(f"s_add_u32 s65, s65, {YB}")
    A("v_lshlrev_b32 v154, 2, v0"); A("v_min_u32 v128, 23, v0"); A(f"v_lshlrev_b32 v128, {C.get('hs', 4)}, v128"); A("v_add_u32 v128, 512, v128"); A("v_max_u32 v129, 128, v154")
    A("s_mov_b32 s74, 0xffffff"); A("s_mov_b32 s75, 0"); A("s_mov_b32 s76, 0"); A("s_mov_b32 s77, -1")
    O = []
    for x in L:
        if x.startswith(("s_addc", "s_cselect")): O[-1] += "\n    " + x
        else: O.append(x)
    return O
def g2(A, C):
    ld = C["ld"]; ACC = 8; HA, YA = (128, 129) if C.get("cl", 1) else (154, 154)
    def rd(i):
        return [f"ds_read_b128 {wreg(i,4*mt,4)}, v140 offset:{(13-i)*5120+1024*mt}" for mt in range(5)]
    n1 = C.get("nw1", 2); NPW = C.get("npw", 8)
    D = []
    for i in range(NR + n1, NR + NPW):
        w = wd(C, i); D += [w[0:3], w[3:4], w[4:5], w[5:6], w[6:]]
    for x in interleave(A, D, [] if C.get("su", 0) else setup2(A, C)): emit(A, x)
    C["stamp"](A, 9)
    if C.get("p1", 0):
        vm = list(A.vm); A("s_cmp_lg_u32 s3, 3"); A("s_cbranch_scc1 f_hok")
        poll(A, 68, "s72", 2, HA, "s[74:75]", 73); A.label("f_hok"); A("s_barrier"); A.vm = vm
    else: poll(A, 68, "s72", 2, HA, "s[74:75]", 73)
    C["stamp"](A, 10)
    NH = C.get("nh", 8); hq = []
    for i in range(14):
        if i < NH:
            for x in hl(C, i): emit(A, x)
        else: hq.append((i, hl(C, i)))
    wq = [(i, wd(C, i)) for i in range(NR + NPW, 14)]
    misc = []
    for q in range(5):
        misc += [f"s_add_u32 m0, s65, {q*1024}", f"s_add_u32 s66, s64, {q*32768}", (f"buffer_load_dwordx4 v152, s[40:43], s66 offen{ld} lds", "y")]
    xs = [("buffer_load_dwordx4 v[156:159], v143, s[44:47], s63 offen", "x"), ("buffer_load_dwordx4 v[160:163], v143, s[44:47], s63 offen offset:64", "x"),
          ("buffer_load_dwordx2 v[164:165], v144, s[44:47], s63 offen offset:128", "x"), (f"buffer_load_dwordx2 v[166:167], v149, s[48:51], s62 offen{ld}", "x")]
    XF, XN = 176, 196
    def last(i):
        A.vmwait("x")
        F = ["s_mov_b32 s66, 0xffff0000"]
        for d in range(10): F += [f"v_lshlrev_b32 v{XF+2*d}, 16, v{156+d}", f"v_and_b32 v{XF+2*d+1}, s66, v{156+d}"]
        F += [f"v_fma_f32 v{XN+d}, v{XF+d}, v166, v167" for d in range(20)]
        for k, nt in enumerate((1, 2, 3, 0)):
            for mt in range(5):
                c = accr(nt * 5 + mt)
                A(f"v_mfma_f32_16x16x32_bf16 {c}, {wreg(i,4*mt,4)}, {hreg(i,4*nt,4)}, {c}")
                if k: A(f"ds_write_b128 v140, {accr(k*5+mt)} offset:{k*5120+mt*1024}")
                for x in F[:2 if k else 3]: A(x)
                F = F[2 if k else 3:]
        assert not F
    YP, SP = C.get("yp", 10), C.get("sp", 8)
    def step(i, role, wq, hq):
        A.vmwait(f"h{i}")
        if i == 0: C["stamp"](A, 6)
        if i >= NR: A("s_waitcnt lgkmcnt(0)")
        if i == 14 - role:
            assert not (wq or hq); last(i); A.vmwait_all(); return
        F = []
        if i + 1 >= NR: F += [lambda t=f"w{i+1}": A.vmwait(t)] + rd(i + 1)
        if wq: F += wq.pop(0)[1]
        if hq: assert i > hq[0][0] - 8; F += hq.pop(0)[1]
        if i == C.get("xp", 5): F += xs
        if role == 2 and i == SP: F += [(f"buffer_load_dword v155, v{YA}, s[68:71], s72 offen sc1", "yf")]
        if role == 2 and i == YP:
            def chk():
                Lk = A.newlabel("yok"); A.vmwait("yf"); vm = list(A.vm)
                A("v_cmp_ne_u32 vcc, s100, v155"); A("s_and_b64 vcc, vcc, s[76:77]"); A(f"s_cbranch_vccz {Lk}")
                poll(A, 68, "s72", 155, YA, "s[76:77]", 73); A.label(Lk); A.vm = vm
            F += [chk] + misc
        M = []
        for nt in range(4):
            for mt in range(5):
                c = accr(nt * 5 + mt)
                M.append([f"v_mfma_f32_16x16x32_bf16 {c}, {wreg(i,4*mt,4)}, {hreg(i,4*nt,4)}, {c if i else 0}"])
        rate = max(1.0, len(F) / 19)
        if rate > 1:
            F = [(lambda y=x: (A("s_nop 0"), emit(A, y))) if isinstance(x, tuple) and x[0].endswith(" lds") else x for x in F]
        rest = interleave(A, M, F, rate=rate)
        for x in rest: emit(A, x)
    assert NH <= 8 and YP < 12 and SP < YP
    for i in range(SP): step(i, 0, wq, hq)
    A("s_cmp_lt_u32 s3, 2"); A("s_cbranch_scc1 f_with13"); vm = list(A.vm)
    w2, h2 = [x for x in wq if x[0] < 13], [x for x in hq if x[0] < 13]
    for i in range(SP, 13): step(i, 2, w2, h2)
    A("s_branch f_no13"); A.label("f_with13"); A.vm = vm
    for i in range(SP, 14): step(i, 1, wq, hq)
    A.label("f_no13")
    C["stamp"](A, 7)
    A("s_waitcnt lgkmcnt(0)")
    A("s_barrier")
    for n in range(1, 4):
        for mt in range(5):
            A(f"ds_read_b128 {vr(ACC+4*(n*5+mt),4)}, v{144+n} offset:{n*5120+mt*1024}")
    Y = 88
    for mt in range(5):
        A(f"ds_read_b64_tr_b16 {vr(Y+2*mt,2)}, v{138 if mt == 4 else 153 if mt & 1 else 139} offset:{(mt>>1)*4096+(mt&1)*512}")
    A("s_lshl_b32 s73, s3, 7"); A("s_add_u32 s72, s72, s73"); A("s_cmp_eq_u32 s3, 1"); A("s_cselect_b32 s72, s99, s72")
    A("s_cmp_lg_u32 s3, 3"); A("s_cbranch_scc1 f_rst"); A("v_subrev_u32 v154, 384, v128"); A.label("f_rst")
    A("v_mov_b32 v155, s101")
    A("buffer_store_dword v155, v154, s[68:71], s72 offen sc1")
    A("s_waitcnt lgkmcnt(15)")
    for i in range(0, 20, 2): A(f"v_pk_add_f32 {vr(ACC+i,2)}, {vr(ACC+i,2)}, {vr(ACC+20+i,2)}")
    A("s_waitcnt lgkmcnt(5)")
    for i in range(0, 20, 2): A(f"v_pk_add_f32 {vr(ACC+40+i,2)}, {vr(ACC+40+i,2)}, {vr(ACC+60+i,2)}")
    for i in range(0, 20, 2): A(f"v_pk_add_f32 {vr(ACC+i,2)}, {vr(ACC+i,2)}, {vr(ACC+40+i,2)}")
    E, YF = ACC + 20, ACC + 40
    for i in range(20): A(f"v_mul_f32 v{E+i}, 0xbfb8aa3b, v{ACC+i}")
    for i in range(20): A(f"v_exp_f32 v{E+i}, v{E+i}")
    A("s_waitcnt lgkmcnt(0)")
    for i in range(10):
        A(f"v_lshlrev_b32 v{YF+2*i}, 16, v{Y+i}"); A(f"v_and_b32 v{YF+2*i+1}, s66, v{Y+i}")
    for i in range(0, 20, 2): A(f"v_pk_add_f32 {vr(E+i,2)}, {vr(E+i,2)}, 1.0 op_sel_hi:[1,0]")
    for i in range(0, 20, 2): A(f"v_pk_mul_f32 {vr(YF+i,2)}, {vr(YF+i,2)}, {vr(XN+i,2)}")
    for lo, hi, stq in ((0, 8, "dwordx4 v[156:159], v143, s[52:55], s63 offen"), (8, 16, "dwordx4 v[160:163], v143, s[52:55], s63 offen offset:64"), (16, 20, "dwordx2 v[164:165], v144, s[52:55], s63 offen offset:128")):
        for i in range(lo, hi): A(f"v_rcp_f32 v{E+i}, v{E+i}")
        for i in range(lo, hi, 2): A(f"v_pk_mul_f32 {vr(ACC+i,2)}, {vr(ACC+i,2)}, {vr(YF+i,2)}")
        for i in range(lo, hi, 2): A(f"v_pk_fma_f32 {vr(ACC+i,2)}, {vr(ACC+i,2)}, {vr(E+i,2)}, {vr(XF+i,2)}")
        for i in range(lo, hi, 2): A(f"v_cvt_pk_bf16_f32 v{156+i//2}, v{ACC+i}, v{ACC+i+1}")
        A.vmop("buffer_store_" + stq, "o")
def gtouch(A, S, wd=1):
    A(f"s_lshl_b32 s{S+4}, s2, 2"); A(f"s_add_u32 s{S+4}, s{S+4}, s3")
    A(f"s_mov_b32 s{S}, s{P_WG}"); A(f"s_mov_b32 s{S+1}, s{P_WG+1}"); A(f"s_mov_b32 s{S+5}, s{S+4}")
    for n, P in ((270, P_WU), (540, P_WD))[:1 + wd]:
        A(f"s_sub_u32 s{S+6}, s{S+4}, {n}"); A(f"s_cmp_ge_u32 s{S+4}, {n}")
        A(f"s_cselect_b32 s{S}, s{P}, s{S}"); A(f"s_cselect_b32 s{S+1}, s{P+1}, s{S+1}"); A(f"s_cselect_b32 s{S+5}, s{S+6}, s{S+5}")
    A(f"s_mov_b32 s{S+2}, 2211840"); A(f"s_mov_b32 s{S+3}, 0x20000"); A(f"s_lshl_b32 s{S+5}, s{S+5}, 13")
    A("v_lshlrev_b32 v252, 7, v0")
    A.vmop(f"buffer_load_dword v251, v252, s[{S}:{S+3}], s{S+5} offen", "t")
def ltouch(A, C):
    S = 32; Cn = C.get("g1c", 6); R = 24 // Cn; lp = {12: 0, 6: 1, 3: 2}[Cn]
    A("s_and_b32 s94, s2, 7"); A("s_lshr_b32 s95, s2, 3"); A("s_lshl_b32 s95, s95, 2"); A("s_add_u32 s95, s95, s3")
    A("v_min_u32 v252, 39, v0"); A("v_lshlrev_b32 v252, 7, v252")
    if C["lt"] & 1:
        A("s_bitcmp1_b32 s3, 0"); A(f"s_cselect_b32 s{S}, s{P_V}, s{P_K}"); A(f"s_cselect_b32 s{S+1}, s{P_V+1}, s{P_K+1}")
        A(f"s_mov_b32 s{S+2}, {NB}"); A(f"s_mov_b32 s{S+3}, 0x20000")
        A("s_mul_i32 s96, s94, 327680"); A("s_lshr_b32 s97, s95, 1"); A("s_mul_i32 s97, s97, 5120"); A("s_add_u32 s96, s96, s97")
        A(f"buffer_load_dword v251, v252, s[{S}:{S+3}], s96 offen")
    if C["lt"] & 2:
        A.srd(S + 4, P_Q, NB)
        A(f"s_lshr_b32 s96, s94, {lp}"); A(f"s_mul_i32 s96, s96, {R*163840}"); A(f"s_mul_i32 s97, s95, {R*1280}"); A("s_add_u32 s96, s96, s97")
        for i in range(max(1, R // 4)):
            A(f"buffer_load_dword v251, v252, s[{S+4}:{S+7}], s96 offen")
            if i + 1 < R // 4: A("s_add_u32 s96, s96, 5120")
    if C["lt"] & 4:
        A.srd(S + 8, P_SK, NB); A("v_min_u32 v252, 19, v0"); A("v_lshlrev_b32 v252, 7, v252")
        A("s_mul_i32 s96, s94, 327680"); A("s_mul_i32 s97, s95, 2560"); A("s_add_u32 s96, s96, s97")
        A(f"buffer_load_dword v251, v252, s[{S+8}:{S+11}], s96 offen")
    if C["lt"] & 8:
        gtouch(A, S + 12); A.vm = []
def td2_setup(A, S):
    A.srd(S, P_WD, 2211840); A(f"s_lshr_b32 s{S+4}, s2, 3"); A(f"s_lshl_b32 s{S+4}, s{S+4}, 2"); A(f"s_add_u32 s{S+4}, s{S+4}, s3"); A(f"s_mul_i32 s{S+4}, s{S+4}, 17280")
    A("v_min_u32 v253, 44, v0"); A("v_lshlrev_b32 v253, 7, v253")
    L = []
    for i in range(3): L.append([(f"buffer_load_dword v251, v253, s[{S}:{S+3}], s{S+4} offen", "t"), f"s_add_u32 s{S+4}, s{S+4}, 5760"])
    return L
def codepf(A, K):
    A("s_getpc_b64 s[88:89]"); A.label("f_pc")
    A(f"s_mov_b32 s90, {K}_end-f_pc"); A("s_mov_b32 s91, 0x20000")
    A("s_lshr_b32 s92, s2, 3"); A("s_lshl_b32 s92, s92, 2"); A("s_add_u32 s92, s92, s3"); A("s_lshl_b32 s92, s92, 9")
    A("v_min_u32 v252, 3, v0"); A("v_lshlrev_b32 v252, 7, v252")
    A("buffer_load_dword v251, v252, s[88:91], s92 offen")
def build(A, C, head, tail, map1, map2, NAME):
    C.setdefault("st", " sc1"); C.setdefault("ld", "")
    K = NAME + "_kernel"
    if C.get("pf", 0): C["pre"] = lambda A: codepf(A, K)
    head(A, K, 256, C); p_kv.epoch_load(A)
    if C.get("lt", 0): ltouch(A, C)
    map1(A, C, "f_conv")
    A("s_mul_i32 s98, s30, 48"); A("s_lshl_b32 s97, s31, 2"); A("s_add_u32 s98, s98, s97"); A("s_add_u32 s98, s98, s3")
    A("s_mov_b32 s99, 0x40000000")
    KA = C.get("kvall", 1)
    if not KA: C["kvgen"] = p_kv.kvtask(A, C, 1, 98, 84, 64)
    def early(A):
        early2(A, C, 84, map2, 62)
        rdf, chk, L = wpre(A, C, 84, 62, 80)
        W0 = C.get("wchk", 252); C["g1fill"] = {W0 - C.get("wfm", 47): rdf, W0: [chk]}
        for n, x in enumerate(L):
            m = W0 + 1 + n * C.get("wsp", 2); assert m < 360 and (n < 30 or m > 252) and (n < 40 or m > 301)
            C["g1fill"][m] = x
        if KA: A("s_waitcnt lgkmcnt(0)"); p_kv.epoch_fin(A)
        A("s_lshr_b32 s95, s48, 1"); A("s_lshl_b32 s95, s95, 13"); A("s_add_u32 s95, s95, 512"); A(f"s_lshl_b32 s96, s31, {1+C.get('hs', 4)}"); A("s_add_u32 s95, s95, s96")
        A("s_and_b32 s96, s3, 1"); A(f"s_lshl_b32 s96, s96, {C.get('hs', 4)}"); A("s_add_u32 s95, s95, s96")
        flagaddr(A, 8, 10, 95)
    C["early"] = early; C.setdefault("endbar", 1)
    if C.get("gt", 0): C["afterkv"] = lambda A: gtouch(A, 72, C.get('gtw', 1))
    p_g1.g1(A, C); trans(A, C, map2, "h", 62, 80); vm = list(A.vm)
    A("s_branch f_join"); A.vm = []
    A.label("f_conv")
    A("s_lshl_b32 s52, s30, 3"); A("s_lshl_b32 s53, s3, 1"); A("s_add_u32 s52, s52, s53"); A("s_add_u32 s52, s52, 768")
    A("s_lshl_b32 s99, s30, 8"); A(f"s_add_u32 s99, s99, {WS_KMB-WS_MB}")
    if KA:
        A("s_mul_i32 s52, s30, 20"); A("s_add_u32 s94, s52, 16"); A("s_add_u32 s94, s94, s3"); A("s_lshl_b32 s53, s3, 2"); A("s_add_u32 s52, s52, s53")
        kv = p_kv.kvtask(A, C, 4, 52, 8, 32, 124, 186); next(kv)
        kv2 = p_kv.kvtask(A, C, 1, 94, 100, 32, 124, 190, False, "b"); next(kv2)
    else:
        kv = p_kv.kvtask(A, C, 2, 52, 8, 32); next(kv)
    p_conv.conv_early(A, C)
    C["stamp"](A, 11)
    next(kv)
    if KA: next(kv2)
    if C.get("klate") == 1:
        for n in range(2):
            for x in p_conv.kdma(A, n, n): emit(A, x)
    p_conv.conv_pads(A, C); wsrc(A)
    A("s_lshr_b32 s52, s30, 3"); A("s_lshl_b32 s52, s52, 10"); A("s_and_b32 s53, s30, 7"); A("s_lshl_b32 s53, s53, 4"); A("s_add_u32 s52, s52, s53")
    A("s_lshl_b32 s53, s3, 2"); A("s_add_u32 s52, s52, s53"); A("s_add_u32 s52, s52, 128")
    flagaddr(A, 32, 13, 52)
    next(kv)
    if KA: next(kv2)
    if C.get("klate") == 2:
        for n in range(2):
            for x in p_conv.kdma(A, n, n): emit(A, x)
    if C.get("gt", 0): gtouch(A, 40, C.get('gtw', 1))
    C["stamp"](A, 1)
    A("s_mul_i32 s52, s30, 10"); A("s_add_u32 s53, s52, 9"); A("s_xor_b32 s52, s52, s53"); A("s_lshr_b32 s52, s52, 4")
    A("s_cmp_lg_u32 s52, 0"); A("s_cselect_b32 s55, -1, 0"); A("s_mov_b32 s54, -1")
    A("s_lshl_b32 s52, s30, 8")
    A.srd(48, P_WD, 2211840)
    early2(A, C, 36, map2, 44)
    p_conv.conv_addr(A, C)
    A("s_and_b32 s46, s30, 7"); A("s_lshl_b32 s46, s46, 2"); A("s_add_u32 s46, s46, s3")
    A("s_lshr_b32 s47, s30, 3"); A("s_mul_i32 s84, s47, 160"); A("s_mul_i32 s95, s46, 40960"); A("s_add_u32 s84, s84, s95"); A("s_add_u32 s85, s84, 1310720")
    A(f"s_add_u32 s86, s76, {p_conv.UBUF}"); A("s_mul_i32 s87, s3, 5120"); A("s_add_u32 s87, s87, 141312")
    A("v_add_u32 v242, s86, v241"); A("v_add_u32 v243, s87, v241"); A("v_add_u32 v246, s86, v248"); A("v_add_u32 v247, s87, v248")
    A("s_mul_i32 s47, s47, 54"); A("s_add_u32 s47, s47, s46"); A("s_mul_i32 s47, s47, 5120")
    A("s_cmp_lt_u32 s46, 22"); A("s_cselect_b32 s46, 163840, 0x40000000"); A("s_add_u32 s46, s46, s47")
    wsd = [sum([[f"s_add_u32 m0, s{86+n}, {q*1024}", "s_nop 0", (f"buffer_load_dwordx4 v{236+q}, s[48:51], s{84+n} offen lds", f"ws{n}")] for q in range(5)], []) for n in range(2)]
    trd = [[lambda n=n: A.vmwait(f"ws{n}")] + [f"ds_read_b64_tr_b16 {vr(72+20*n+4*mt+2*u,2)}, v{(242 if mt < 4 else 246)+n} offset:{64*(mt>>1)+8*(mt&1)+1280*u}" for mt in range(5) for u in range(2)] for n in range(2)]
    wst = [[(f"buffer_store_dwordx4 {vr(72+20*n+4*mt,4)}, v{WA+(mt>>2)}, s[36:39], s{47-n} offen offset:{(mt&3)*1024}{C['st']}", "wst") for mt in range(5)] for n in range(2)]
    rdf, chk, L = wpre(A, C, 36, 44, 48)
    U1 = p_conv.udma(A, C, 1, 1); K2 = p_conv.kdma(A, 2, 0); U2 = p_conv.udma(A, C, 2, 0); R = C.get("rtr", 2); CF = {}
    def add(r, x): CF.setdefault(divmod(r, 8), []).extend(x)
    add(0, wsd[0]); add(1, wsd[1]); add(R, trd[0]); add(R + 1, wst[0] + U1[:10]); add(R + 2, U1[10:] + p_conv.upads(1))
    R = C.get("rt2", R + 1); add(R, trd[1]); add(R + 1, wst[1])
    add(R + 3, ["v_mov_b32 v250, s100", lambda: A.vmwait("wst"), ("buffer_store_dword v250, v249, s[40:43], 0 offen offset:128 sc1", "fl")])
    k = C.get("k2", 7); add(k, K2[:6]); add(k + 1, K2[6:] + p_conv.kpatch(2, 0)); add(k + 2, U2[:10]); add(k + 3, U2[10:])
    c0, c1 = C.get("c0", 11), C.get("c1", 19); add(c0 - 2, rdf); add(c0, [chk])
    for r in range(c0, c1): add(r, sum(L[50*(r-c0)//(c1-c0):50*(r+1-c0)//(c1-c0)], []))
    C["cfill"] = CF
    vk = list(A.vm); A("s_cmp_lg_u32 s3, 3"); A("s_cbranch_scc1 f_kok")
    poll(A, 32, "s52", 2, 254, "s[54:55]", 53); A.label("f_kok"); A("s_barrier"); A.vm = vk
    C["stamp"](A, 2)
    p_conv.conv_main(A, C)
    C["stamp"](A, 5)
    A("s_barrier")
    trans(A, C, map2, "yst", 44, 48)
    assert A.vm == vm, (A.vm, vm)
    A.label("f_join")
    g2(A, C)
    tail(A, K, C, 0, 512, 256)
    return "; @launch grid=(256,1,1) block=(256,1,1) lds=163840\n"
```
